```python
import torch

def _softmax(x, axis=-1):
    return torch.softmax(x, dim=axis)
def _gelu(x):
    return torch.nn.functional.gelu(x, approximate="tanh")
def _silu(x):
    return torch.nn.functional.silu(x)
def _sigmoid(x):
    return torch.sigmoid(x)
def _layernorm(x, axis=-1, eps=1e-5):
    m = x.mean(dim=axis, keepdim=True)
    v = x.var(dim=axis, keepdim=True, unbiased=False)
    return (x - m) / torch.sqrt(v + eps)
def _scatter_add(tgt, idx, src, axis=0):
    return tgt.clone().index_add_(axis, idx, src)
def _segment_sum(src, seg, n):
    out = torch.zeros((n,) + src.shape[1:], dtype=src.dtype)
    return out.index_add_(0, seg, src)
def _pad(x, pw):
    flat = tuple(v for pair in reversed(pw) for v in pair)
    return torch.nn.functional.pad(x, flat)

kernel_name = 'interleave_layers__mha_block_cached__swiglu_ffn__decode'

def setup_inputs():

    _w = (lambda a: (lambda t: t.to(torch.bfloat16) if t.is_floating_point() else t)(torch.as_tensor(a)))
    def _A_setup():
        B, Sq, D = 1, 1, 512
        H, Sk, Dh = 32, 4096, 128
        return {
            "x": _w((lambda *s: torch.randn(*s, dtype=torch.bfloat16) * 0.05)(B, Sq, D)),
            "k_cache": _w((lambda *s: torch.randn(*s, dtype=torch.bfloat16) * 1.6)(B, H, Sk, Dh)),
            "v_cache": _w((lambda *s: torch.randn(*s, dtype=torch.bfloat16) * 1.6)(B, H, Sk, Dh)),
            "wq": _w((lambda *s: torch.randn(*s, dtype=torch.bfloat16) * 1.6)(D, H * Dh) * (D ** -0.5)),
            "wo": _w((lambda *s: torch.randn(*s, dtype=torch.bfloat16) * 1.6)(H * Dh, D) * ((H * Dh) ** -0.5)),
        }
    _A_in = _A_setup()

    def _B_setup():
        B, S, D, F = 1, 1, 512, 1376
        return {
            "x": _w((lambda *s: torch.randn(*s, dtype=torch.bfloat16) * 0.05)(B, S, D)),
            "w_gate": _w((lambda *s: torch.randn(*s, dtype=torch.bfloat16) * 0.05)(D, F)),
            "w_up": _w((lambda *s: torch.randn(*s, dtype=torch.bfloat16) * 0.05)(D, F)),
            "w_down": _w((lambda *s: torch.randn(*s, dtype=torch.bfloat16) * 0.05)(F, D)),
        }
    _B_in = _B_setup()

    return {
        "A_x": _A_in["x"],
        "A_k_cache": _A_in["k_cache"],
        "A_v_cache": _A_in["v_cache"],
        "A_wq": _A_in["wq"],
        "A_wo": _A_in["wo"],
        "B_x": _B_in["x"],
        "B_w_gate": _B_in["w_gate"],
        "B_w_up": _B_in["w_up"],
        "B_w_down": _B_in["w_down"],
    }

def reference(A_x, A_k_cache, A_v_cache, A_wq, A_wo, B_x, B_w_gate, B_w_up, B_w_down):
    def _A_ref(x, k_cache, v_cache, wq, wo):
        B, Sq, D = x.shape
        H, Dh = 32, 128
        q = (lambda x, *d: x.permute(*d))((x @ wq).reshape(B, Sq, H, Dh), 0, 2, 1, 3)
        scores = torch.einsum("bhqd,bhkd->bhqk", q, k_cache) * (Dh ** -0.5)
        p = _softmax(scores, axis=-1)
        o = torch.einsum("bhqk,bhkd->bhqd", p, v_cache)
        return (lambda x, *d: x.permute(*d))(o, 0, 2, 1, 3).reshape(B, Sq, H * Dh) @ wo

    def _B_ref(x, w_gate, w_up, w_down):
        g = _silu(x @ w_gate)
        u = x @ w_up
        return (g * u) @ w_down

    x = A_x
    x = x + _A_ref(_layernorm(x, axis=-1), A_k_cache, A_v_cache, A_wq, A_wo)
    x = x + _B_ref(_layernorm(x, axis=-1), B_w_gate, B_w_up, B_w_down)
    x = x + _A_ref(_layernorm(x, axis=-1), A_k_cache, A_v_cache, A_wq, A_wo)
    x = x + _B_ref(_layernorm(x, axis=-1), B_w_gate, B_w_up, B_w_down)
    return x
```

```python
NAME = "interleave_layers__mha_block_cached__swiglu_ffn__decode"
REF = "cdna_kernels/" + NAME + ".s.ref"


class Asm:
    def __init__(self):
        self.lines = []
        self.uid = 0

    def __call__(self, text):
        for ln in text.split("\n"):
            ln = ln.strip()
            if ln:
                self.lines.append(ln if ln.endswith(":") else "    " + ln)

    def label(self, stem):
        self.uid += 1
        return f"L_{stem}_{self.uid}"

    def nop(self, n):
        while n > 0:
            k = min(n, 16)
            self(f"s_nop {k - 1}")
            n -= k

    def text(self):
        return "\n".join(self.lines)


def vr(lo, n=1, p="v"):
    return f"{p}{lo}" if n == 1 else f"{p}[{lo}:{lo + n - 1}]"


def reg(idx, n=1):
    return vr(idx, n, "v") if idx < 256 else vr(idx - 256, n, "a")


def wrap(body, grid, block, lds, nvgpr=512, accum=256, nsgpr=102):
    head = []
    for ln in open(REF).read().split("\n"):
        if ln.startswith("; @launch"):
            break
        head.append(ln)
    k = NAME + "_kernel"
    return "\n".join(head) + f"""
; @launch grid=({grid},1,1) block=({block},1,1) lds={lds}
.amdgcn_target "amdgcn-amd-amdhsa--gfx950"
.text
.globl {k}
.p2align 8
.type {k},@function
{k}:
{body}
.section .rodata,"a"
.p2align 6
.amdhsa_kernel {k}
  .amdhsa_next_free_vgpr {nvgpr}
  .amdhsa_next_free_sgpr {nsgpr}
  .amdhsa_accum_offset {accum}
  .amdhsa_group_segment_fixed_size 0
  .amdhsa_kernarg_size 96
  .amdhsa_user_sgpr_count 2
  .amdhsa_user_sgpr_kernarg_segment_ptr 1
  .amdhsa_system_sgpr_workgroup_id_x 1
  .amdhsa_float_denorm_mode_32 3
.end_amdhsa_kernel
"""
```

```python
import re

TRANS = ("v_exp_", "v_log_", "v_rcp_", "v_rsq_", "v_sqrt_", "v_sin_", "v_cos_")
RX = re.compile(r"^(-?)\|?([vas])(?:(\d+)|\[(\d+):(\d+)\])\|?$")


def regs(op):
    op = op.strip()
    if op == "vcc":
        return {"vcc"}
    if op in ("exec", "m0"):
        return {op}
    m = RX.match(op)
    if not m:
        return set()
    k = m.group(2)
    lo = int(m.group(3) or m.group(4))
    hi = int(m.group(3) or m.group(5))
    return {f"{k}{i}" for i in range(lo, hi + 1)}


class Ins:
    def __init__(self, line):
        self.line = line
        t = line.strip()
        self.label = t.endswith(":") or t.startswith(".") or t.startswith(";")
        self.states = 0 if self.label else 1
        self.kind = "none"
        self.dst, self.src, self.srcc, self.sdata = set(), set(), set(), set()
        self.dpp = self.perm = self.trans = self.rlane = self.ldsdma = False
        self.op = ""
        if self.label:
            return
        op, _, rest = t.partition(" ")
        self.op = op
        ops = [o.strip().split(" ")[0] for o in rest.split(",")] if rest else []
        R = [regs(o) for o in ops]
        allr = set().union(*R) if R else set()
        tail = set().union(*R[1:]) if len(R) > 1 else set()
        if op == "s_nop":
            self.states = int(rest, 0) + 1
        if op.startswith("v_mfma") or op.startswith("v_smfmac"):
            self.kind = "mfma"
            self.dst = R[0]
            if op.startswith("v_smfmac"):
                self.srcc, self.ab = R[0], R[1] | R[2] | R[3]
            else:
                self.srcc, self.ab = R[3], R[1] | R[2]
            self.src = self.srcc | self.ab
            assert "16x16x32_bf16" in op or "16x16x64_bf16" in op, op
        elif op.startswith("v_"):
            self.kind = "valu"
            self.dst, self.src = set(R[0]), set(tail)
            self.dpp = "_dpp" in op
            self.perm = op.startswith("v_permlane")
            self.trans = op.startswith(TRANS)
            self.rlane = op.startswith(("v_readlane", "v_readfirstlane"))
            if self.perm or op.startswith("v_swap"):
                self.dst = self.src = allr
            if op.startswith(("v_fmac", "v_writelane")) or self.dpp:
                self.src |= R[0]
        elif op.startswith("ds_"):
            self.kind = "mem"
            if op.startswith("ds_read"):
                self.dst, self.src = R[0], tail
            else:
                self.src = allr
        elif op.startswith(("buffer_", "global_")):
            self.kind = "vmem"
            self.ldsdma = t.endswith(" lds") or " lds " in t
            if "load" in op and not self.ldsdma:
                self.dst, self.src = R[0], tail
            else:
                self.src = allr
                if "store" in op and len(R[0]) > 2:
                    self.sdata = R[0]
        elif op.startswith("s_"):
            self.kind = "salu"
            if R and not op.startswith(("s_cmp", "s_bitcmp")):
                self.dst, self.src = R[0], tail
            else:
                self.src = allr


def isv(x):
    return {r for r in x if r[0] in "va" and r != "vcc"}


def need(p, c):
    n = 0
    if p.kind == "valu":
        vd = isv(p.dst)
        sd = p.dst - vd
        if c.kind == "mfma" and vd & c.src:
            n = max(n, 2)
        if c.kind == "valu":
            if (c.dpp or c.perm) and vd & c.src:
                n = max(n, 2)
            if c.rlane and vd & c.src:
                n = max(n, 1)
            if p.trans and vd & c.src:
                n = max(n, 1)
            if sd & c.src:
                n = max(n, 4 if c.rlane or c.op.startswith("v_writelane") else 2)
        if c.kind == "vmem" and sd & c.src:
            n = max(n, 5)
    if p.kind == "mfma":
        if c.kind == "mfma":
            if p.dst & c.ab:
                n = max(n, 8)
            if p.dst & c.srcc and p.dst != c.srcc:
                n = max(n, 6)
            if p.dst & c.dst and p.dst != c.srcc:
                n = max(n, 8)
        elif c.kind in ("valu", "mem", "vmem"):
            if p.dst & (c.src | c.dst):
                n = max(n, 8)
            if p.srcc & c.dst:
                n = max(n, 3)
    if p.kind == "vmem" and c.kind == "valu" and p.sdata & c.dst:
        n = max(n, 2)
    if p.kind == "salu" and "m0" in p.dst and c.ldsdma:
        n = max(n, 1)
    return n


def pad(lines, mfma_states=1, smfmac_states=1):
    out, hist, total = [], [], 0
    for ln in lines:
        c = Ins(ln)
        if not c.label:
            dist, want = 0, 0
            for p in reversed(hist):
                want = max(want, need(p, c) - dist)
                dist += p.states
                if dist > 12:
                    break
            if want > 0:
                nop = Ins(f"    s_nop {want - 1}")
                out.append(nop.line)
                hist.append(nop)
                total += want
            if c.kind == "mfma":
                c.states = smfmac_states if c.op.startswith("v_smfmac") else mfma_states
            hist.append(c)
        out.append(ln)
    return out, total
```

```python
import struct
import sys
sys.path.insert(0, "gen")
from asmlib import *
from hazard import pad

KSLOT = 1040
KAREA = 32 * KSLOT
L_WQ = 4 * KAREA
L_XS = L_WQ + 16 * 1088
L_O = L_XS + 4096
L_LM = L_O + 2048
L_GT = 2 * KAREA
L_DN = 3 * KAREA - 3072
L_UP = L_DN + 6144
LDS = 160 * 1024

W_Q, W_A = 0, 2048
W_C, W_SQ, W_ML, W_SC, W_COL = 0, 1536, 1664, 1792, 2048
W_G = 32 * 16384
WS_BYTES = 0x10000000
OOB = 0x80000000

X_, K_, V_, WQ_, WO_, GU_, DN_, OUT_, DBG_, WS_, WSP_, WSN_ = [f"s[{4 * i}:{4 * i + 3}]" for i in range(1, 13)]
sT, sJ, sW, sKL, sT0, sT1, sSO, sSP, sTHR, sMX = [f"s{i}" for i in range(52, 62)]
sTB = ["s62", "s63", "s64", "s65"]
sG = ["s66", "s67", "s68", "s69"]
sUP = 70
S_STAMP = 72


def f32(x):
    return "0x%08x" % struct.unpack("<I", struct.pack("<f", x))[0]


class VAlloc:
    def __init__(self, lo):
        self.n = lo

    def __call__(self, n=1, al=1):
        self.n = (self.n + al - 1) // al * al
        r = self.n
        self.n += n
        return r


def gen(stamps=None, stamp_wave=0, maxout=16, chk_at=16, pub_at=28, qld_at=12, clk=False):
    a = Asm()
    va = VAlloc(1)
    v = lambda r, n=1: vr(r, n)
    ag = lambda r, n=1: vr(r, n, "a")
    vL, vC, vS = va(), va(), va()
    vKV, vK, vWO, vDN = va(), va(), va(), va()
    vQst, vQst0, vQA, vST, vSTst = va(), va(), va(), va(), va()
    vIdxQ, vIdxP, vMaskP = va(), va(), va()
    XO = va(16, 4)
    XP = va(8, 4)
    CK = va(2, 2)
    CG = va(2, 2)
    vOw, vLM, vOr, vAst, vMLst, vMLld, vBst, vXld, vXSr = [va() for _ in range(9)]
    vCst, vCld, vDst, vEPS, vXSw, vOUT = [va() for _ in range(6)]
    MD = va(4)
    GUA = va(3)
    vTr = va()
    T = va(0, 4)
    NT = 128 - T
    ACC = T
    QA = T + 32
    ST = T + 40
    Z = T + 44
    assert NT >= 60, NT
    VV = 128
    aK, aWQ, aWO, aGU, aDN, aONE, aDEL = 0, 128, 144, 176, 192, 200, 204

    names = []

    def stamp(name):
        if stamps is not None and (stamps == "all" or name in stamps):
            k = len(names)
            assert k < 15
            names.append(name)
            a(f"{'s_memtime' if clk else 's_memrealtime'} s[{S_STAMP + 2 * k}:{S_STAMP + 2 * k + 1}]")

    vm = dict(n=0, done=0)

    def vmem(text, throttle=False):
        if throttle and vm["n"] - vm["done"] >= maxout:
            wait(vm["n"] - maxout + 1)
        a(text)
        vm["n"] += 1
        return vm["n"]

    def wait(tag):
        if tag > vm["done"]:
            assert vm["n"] - tag <= 63
            a(f"s_waitcnt vmcnt({vm['n'] - tag})")
            vm["done"] = tag

    def waitall():
        a("s_waitcnt vmcnt(0)")
        vm["done"] = vm["n"]

    def dma(vaddr, srd, soff, m0base, ldsoff, throttle=True):
        pre = f"s_add_u32 m0, {m0base}, {ldsoff}\ns_mov_b32 {sSO}, {soff}\n"
        return vmem(pre + f"buffer_load_dwordx4 {v(vaddr)}, {srd}, {sSO} offen nt lds", throttle)

    def publish(stores):
        for srd, fl in ((WSP_, ""), (WSN_, " sc1")):
            for op, data, addr, so, off in stores:
                vmem(f"{op} {data}, {v(addr)}, {srd}, {so} offen offset:{off}{fl}")

    def validate(regs, tmp):
        a(f"v_max3_u32 {v(tmp)}, {v(regs[0])}, {v(regs[1])}, {v(regs[2])}")
        rest = regs[3:]
        while len(rest) >= 2:
            a(f"v_max3_u32 {v(tmp)}, {v(tmp)}, {v(rest[0])}, {v(rest[1])}")
            rest = rest[2:]
        if rest:
            a(f"v_max_u32 {v(tmp)}, {v(tmp)}, {v(rest[0])}")
        a(f"v_cmp_lt_u32 vcc, {sTHR}, {v(tmp)}")

    budget = f"s_add_u32 {sSP}, {sSP}, 0x10000\ns_cselect_b32 {sTHR}, -1, {sTHR}"
    tail = Asm()

    def poll(loads, tmp, shadow=None):
        lab = a.label("poll")
        a(f"{lab}:")
        regs = []
        for n, r, addr, so, off in loads:
            op = {1: "dword", 2: "dwordx2", 4: "dwordx4"}[n]
            vmem(f"buffer_load_{op} {v(r, n)}, {v(addr)}, {WS_}, {so} offen offset:{off} sc1")
            regs += list(range(r, r + n))
        a(budget)
        if shadow:
            shadow()
        waitall()
        validate(regs, tmp)
        a(f"s_cbranch_vccnz {lab}")

    def dpp(op, d, s0, s1, ctrl, rm="0xf"):
        srcs = v(s0) if s1 is None else f"{v(s0)}, {v(s1)}"
        a(f"{op}_dpp {v(d)}, {srcs} {ctrl} row_mask:{rm} bank_mask:0xf")

    XOR1, XOR2 = "quad_perm:[1,0,3,2]", "quad_perm:[2,3,0,1]"

    def mfma(d, A, B, C):
        a(f"v_mfma_f32_16x16x32_bf16 {d}, {A}, {B}, {C}")

    def smf(d, A, B, idx):
        a(f"v_smfmac_f32_16x16x64_bf16 {d}, {A}, {B}, {v(idx)}")

    def cvt(d, x, y):
        a(f"v_cvt_pk_bf16_f32 {v(d)}, {v(x)}, {v(y)}")

    def zero(r, n):
        for i in range(0, n, 2):
            a(f"v_mov_b64 {v(r + i, 2)}, 0")

    a(f"""
    s_cmp_ge_u32 s2, 256
    s_cbranch_scc1 L_end
    s_load_dwordx2 s[40:41], s[0:1], 88
    s_load_dwordx2 s[4:5], s[0:1], 0
    s_load_dwordx2 s[16:17], s[0:1], 24
    s_load_dwordx2 s[8:9], s[0:1], 8
    s_load_dwordx2 s[12:13], s[0:1], 16
    s_load_dwordx2 s[36:37], s[0:1], 80
    """)
    stamp("start")
    a(f"""
    s_and_b32 {sT0}, s2, 7
    s_lshr_b32 {sT1}, s2, 6
    s_lshl2_add_u32 {sT}, {sT0}, {sT1}
    s_bfe_u32 {sJ}, s2, 0x30003
    v_lshrrev_b32 {v(Z)}, 6, v0
    v_and_b32 {v(vL)}, 63, v0
    v_readfirstlane_b32 {sW}, {v(Z)}
    v_and_b32 {v(vC)}, 15, v0
    v_bfe_u32 {v(vS)}, v0, 4, 2
    v_lshlrev_b32 {v(vXld)}, 4, v0
    s_lshl_b32 {sTB[0]}, {sT}, 14
    s_lshl_b32 {sT0}, {sJ}, 11
    s_add_u32 {sT0}, {sT0}, {sTB[0]}
    s_lshl_b32 {sT1}, s2, 9
    s_add_u32 {sT1}, {sT1}, {W_G - 2048}
    s_cmp_lt_u32 {sW}, 2
    s_cselect_b32 {sT0}, {sT0}, {sT1}
    v_add_u32 {v(Z)}, {sT0}, {v(vXld)}
    v_mov_b32 {v(Z + 1)}, {OOB}
    v_cmp_gt_u32 vcc, 160, v0
    v_mov_b32 {v(Z + 4)}, -1
    v_mov_b32 {v(Z + 5)}, -1
    v_mov_b32 {v(Z + 6)}, -1
    v_mov_b32 {v(Z + 7)}, -1
    v_cndmask_b32 {v(Z)}, {v(Z + 1)}, {v(Z)}, vcc
    s_lshl_b32 {sT0}, {sJ}, 7
    v_lshl_add_u32 {v(Z + 2)}, {v(vS)}, 3, {sT0}
    s_lshl_b32 {sT0}, {sT}, 20
    s_lshl_b32 {sT1}, {sJ}, 17
    s_add_u32 {sT0}, {sT0}, {sT1}
    v_add_u32 {v(vKV)}, {sT0}, {v(vXld)}
    v_and_b32 {v(vK)}, 16, v0
    v_lshlrev_b32 {v(vK)}, 3, {v(vK)}
    v_xor_b32 {v(vK)}, {v(vK)}, {v(vKV)}
    s_lshl_b32 {sT0}, {sJ}, 19
    s_lshl_b32 {sT1}, {sW}, 17
    s_add_u32 {sT0}, {sT0}, {sT1}
    s_lshl_b32 {sT1}, {sT}, 8
    s_add_u32 {sT0}, {sT0}, {sT1}
    v_lshl_add_u32 {v(Z + 3)}, {v(vS)}, 13, {sT0}
    v_lshl_add_u32 {v(Z + 3)}, {v(vC)}, 4, {v(Z + 3)}
    s_mul_i32 {sKL}, {sW}, {KAREA}
    s_lshl_b32 {sT1}, {sW}, 12
    s_mov_b32 s42, {WS_BYTES}
    s_mov_b32 s43, 0x20000
    s_mov_b32 s6, 1024
    s_mov_b32 s7, 0x20000
    s_mov_b32 s18, 0x400000
    s_mov_b32 s19, 0x20000
    s_mov_b32 s10, 0x2000000
    s_mov_b32 s11, 0x20000
    s_waitcnt lgkmcnt(0)
    """)
    vmem(f"buffer_store_dwordx4 {v(Z + 4, 4)}, {v(Z)}, {WS_}, 0 offen sc1")
    for tau in range(4):
        vmem(f"buffer_load_dwordx2 {v(XP + 2 * tau, 2)}, {v(Z + 2)}, {X_}, 0 offen offset:{32 * tau}")
    for i in range(4):
        tag_wq = dma(Z + 3, WQ_, i * 4 * 8192, sT1, L_WQ + i * 1024)

    def kload(u):
        return dma(vK, K_, u * 4096, sKL, (8 * (u & 3) + (u >> 2)) * KSLOT)

    nk0 = maxout - vm["n"]
    for u in range(nk0):
        kload(u)

    a(f"""
    s_load_dwordx2 s[20:21], s[0:1], 32
    s_load_dwordx2 s[24:25], s[0:1], 48
    s_load_dwordx2 s[{sUP}:{sUP + 1}], s[0:1], 56
    s_load_dwordx2 s[28:29], s[0:1], 64
    s_load_dwordx2 s[32:33], s[0:1], 72
    s_mov_b32 s14, 0x2000000
    s_mov_b32 s15, 0x20000
    s_mov_b32 s22, 0x400000
    s_mov_b32 s23, 0x20000
    s_mov_b32 s26, {512 * 2752}
    s_mov_b32 s27, 0x20000
    s_mov_b32 s30, {1376 * 1024}
    s_mov_b32 s31, 0x20000
    s_mov_b32 s34, 1024
    s_mov_b32 s35, 0x20000
    s_mov_b32 s38, 256
    s_mov_b32 s39, 0x20000
    s_mov_b32 s44, s40
    s_mov_b32 s45, s41
    s_mov_b32 s47, 0x20000
    s_mov_b32 s48, s40
    s_mov_b32 s49, s41
    s_mov_b32 s51, 0x20000
    s_mov_b32 {sSP}, 0
    s_mov_b32 {sTHR}, -2
    s_add_u32 {sTB[1]}, {sTB[0]}, 4096
    s_add_u32 {sTB[2]}, {sTB[0]}, 8192
    s_add_u32 {sTB[3]}, {sTB[0]}, 12288
    s_lshl_b32 {sG[0]}, {sJ}, 12
    s_add_u32 {sG[0]}, {sG[0]}, {W_G}
    s_add_u32 {sG[1]}, {sG[0]}, 0x8000
    s_add_u32 {sG[2]}, {sG[0]}, 0x10000
    s_add_u32 {sG[3]}, {sG[0]}, 0x18000
    """)
    O_ = Z + 1
    r_, cp = Z + 8, Z + 9
    t0, t1, t2 = Z + 10, Z + 11, Z + 12
    vFlag, vFb = Z + 2, Z + 3

    def sel(d, cond, x, y=None):
        a(f"{cond}\nv_cndmask_b32 {v(d)}, {v(O_ if y is None else y)}, {v(x)}, vcc")

    a(f"""
    v_bfe_u32 {v(r_)}, v0, 2, 2
    v_and_b32 {v(cp)}, 3, v0
    s_getreg_b32 {sMX}, hwreg(HW_REG_XCC_ID, 0, 4)
    s_or_b32 {sMX}, {sMX}, 0x80
    s_lshl3_add_u32 {sT0}, {sT}, {sJ}
    v_mov_b32 {v(t0)}, {sT0}
    v_mov_b32 {v(vFb)}, {sMX}
    """)
    sel(vFlag, "v_cmp_eq_u32 vcc, 0, v0", t0)
    a(f"""
    s_lshl_b32 {sT0}, {sJ}, 8
    s_lshl_b32 {sT1}, {sW}, 5
    s_add_u32 {sT1}, {sT1}, {sT0}
    v_lshl_add_u32 {v(t0)}, {v(vS)}, 3, {sT1}
    v_add_u32 {v(t1)}, {4096 + W_COL}, {v(t0)}
    """)
    sel(vQst, f"v_cmp_eq_u32 vcc, 0, {v(vC)}", t0)
    sel(vQst0, f"v_cmp_eq_u32 vcc, 1, {v(vC)}", t1, vQst)
    a(f"""
    v_and_b32 {v(t0)}, 1, v0
    v_lshl_add_u32 {v(t1)}, {v(t0)}, 7, {sT0}
    v_lshrrev_b32 {v(t2)}, 1, {v(vL)}
    v_lshl_add_u32 {v(vAst)}, {v(t2)}, 2, {v(t1)}
    """)
    a(f"""
    v_lshl_add_u32 {v(t1)}, {v(r_)}, 1, {v(t0)}
    v_lshlrev_b32 {v(t1)}, 8, {v(t1)}
    v_lshl_add_u32 {v(t1)}, {v(vS)}, 4, {v(t1)}
    v_bfe_u32 {v(t2)}, v0, 1, 1
    v_lshl_add_u32 {v(vQA)}, {v(t2)}, 7, {v(t1)}
    v_mul_u32_u24 {v(t2)}, 0xaaaa, {v(t2)}
    v_add_u32 {v(vIdxQ)}, 0x4444, {v(t2)}
    v_lshlrev_b32 {v(vST)}, 4, {v(cp)}
    s_lshl_b32 {sT0}, {sJ}, 3
    v_mov_b32 {v(t1)}, {sT0}
    """)
    sel(vSTst, "v_cmp_eq_u32 vcc, 192, v0", t1)
    sel(vMLst, f"v_cmp_eq_u32 vcc, 63, {v(vL)}", t1)
    a(f"""
    v_lshl_add_u32 {v(t1)}, {v(vS)}, 1, {v(vC)}
    v_and_b32 {v(t1)}, 7, {v(t1)}
    v_lshlrev_b32 {v(vMLld)}, 3, {v(t1)}
    v_mov_b32 {v(t1)}, 0x0000ffff
    v_mov_b32 {v(t2)}, 0xffff0000
    v_cmp_eq_u32 vcc, 3, {v(cp)}
    v_cndmask_b32 {v(vMaskP)}, {v(t1)}, {v(t2)}, vcc
    v_cndmask_b32 {v(t1)}, {v(cp)}, 0, vcc
    v_or_b32 {v(t1)}, 12, {v(t1)}
    v_mul_u32_u24 {v(vIdxP)}, 0x1111, {v(t1)}
    """)
    a(f"""
    s_mul_i32 {sT0}, {sT}, 48
    s_sub_i32 {sT0}, 1376, {sT0}
    s_min_i32 {sT0}, {sT0}, 48
    v_cmp_gt_i32 vcc, {sT0}, {v(vL)}
    v_cndmask_b32 {v(t1)}, 0, {v(vMaskP)}, vcc
    """)
    for q in range(4):
        a(f"v_cmp_eq_u32 vcc, {q}, {v(r_)}\nv_cndmask_b32 {v(MD + q)}, 0, {v(t1)}, vcc")
    a(f"""
    v_mov_b32 {v(t1)}, 0x3f803f80
    v_cmp_eq_u32 vcc, 0, {v(t0)}
    v_cndmask_b32 {v(t1)}, 0, {v(t1)}, vcc
    v_lshlrev_b32 {v(t2)}, 4, {v(cp)}
    v_mov_b32 {v(Z + 13)}, 0x3f80
    v_lshlrev_b32 {v(t2)}, {v(t2)}, {v(Z + 13)}
    v_cmp_gt_u32 vcc, 2, {v(cp)}
    v_cndmask_b32 {v(t2)}, 0, {v(t2)}, vcc
    v_cmp_eq_u32 vcc, {v(r_)}, {v(vS)}
    v_cndmask_b32 {v(t2)}, 0, {v(t2)}, vcc
    """)
    for i in range(4):
        a(f"v_accvgpr_write_b32 {ag(aONE + i)}, {v(t1)}\nv_accvgpr_write_b32 {ag(aDEL + i)}, {v(t2)}")
    a(f"""
    s_lshl_b32 {sT0}, {sW}, 9
    s_add_u32 {sT1}, {sT0}, {L_O}
    v_lshl_add_u32 {v(vOw)}, {v(vC)}, 5, {sT1}
    s_add_u32 {sT1}, {sT0}, {L_LM}
    v_lshl_add_u32 {v(vLM)}, {v(vL)}, 3, {sT1}
    v_lshlrev_b32 {v(t1)}, 3, {v(vL)}
    v_add_u32 {v(vOr)}, {L_O}, {v(t1)}
    v_add_u32 {v(vXSr)}, {L_XS}, {v(t1)}
    v_add_u32 {v(vXSw)}, {L_XS}, {v(vXld)}
    v_mov_b32 {v(vEPS)}, {f32(1e-5)}
    """)
    a(f"""
    s_lshl_b32 {sT0}, {sT}, 5
    v_lshl_add_u32 {v(t1)}, {v(vC)}, 1, {sT0}
    s_lshl_b32 {sT0}, {sW}, 10
    v_add_u32 {v(t2)}, {sT0}, {v(t1)}
    v_and_b32 {v(Z + 13)}, 49, v0
    """)
    sel(vDst, f"v_cmp_eq_u32 vcc, 0, {v(Z + 13)}", t2)
    a(f"""
    v_lshrrev_b32 {v(t2)}, 5, v0
    v_lshl_add_u32 {v(t2)}, {v(t2)}, 10, {v(t1)}
    v_and_b32 {v(Z + 13)}, 17, v0
    """)
    sel(vBst, f"v_cmp_eq_u32 vcc, 0, {v(Z + 13)}", t2)
    a(f"""
    s_lshl_b32 {sT0}, {sW}, 9
    s_lshl2_add_u32 {sT0}, {sJ}, {sT0}
    s_cmp_lt_u32 {sW}, 3
    s_cselect_b32 {sT0}, {sT0}, {OOB}
    v_lshl_add_u32 {v(t1)}, {v(vC)}, 5, {sT0}
    """)
    sel(vCst, f"v_cmp_eq_u32 vcc, 0, {v(vS)}", t1)
    a(f"""
    v_min_u32 {v(t1)}, 47, {v(vL)}
    v_lshlrev_b32 {v(vCld)}, 5, {v(t1)}
    s_lshl_b32 {sT0}, {sJ}, 7
    v_lshl_add_u32 {v(t1)}, {v(vS)}, 3, {sT0}
    v_and_b32 {v(Z + 13)}, 0xcf, v0
    """)
    sel(vOUT, f"v_cmp_eq_u32 vcc, 0, {v(Z + 13)}", t1)
    a(f"""
    v_lshrrev_b32 {v(t1)}, 3, {v(vL)}
    v_lshl_add_u32 {v(t1)}, {v(t1)}, 10, {sT0}
    v_and_b32 {v(t2)}, 7, v0
    v_lshl_add_u32 {v(t1)}, {v(t2)}, 4, {v(t1)}
    s_lshl_b32 {sT0}, {sT}, 17
    s_lshl_b32 {sT1}, {sW}, 15
    s_add_u32 {sT0}, {sT0}, {sT1}
    v_add_u32 {v(vWO)}, {sT0}, {v(t1)}
    s_and_b32 {sT1}, {sW}, 1
    s_lshl1_add_u32 {sT0}, {sT}, {sT1}
    s_mul_i32 {sT0}, {sT0}, {24 * 1024}
    v_add_u32 {v(vDN)}, {sT0}, {v(t1)}
    s_mul_i32 {sT0}, {sJ}, {64 * 2752}
    s_mul_i32 {sT1}, {sT}, 96
    s_add_u32 {sT0}, {sT0}, {sT1}
    """)
    for i in range(3):
        a(f"""
        v_add_u32 {v(t1)}, {64 * i}, {v(vL)}
        v_mul_u32_u24 {v(t2)}, 10923, {v(t1)}
        v_lshrrev_b32 {v(t2)}, 16, {v(t2)}
        v_mul_u32_u24 {v(t2)}, {2752 - 96}, {v(t2)}
        v_lshl_add_u32 {v(t2)}, {v(t1)}, 4, {v(t2)}
        v_add_u32 {v(GUA + i)}, {sT0}, {v(t2)}
        """)
    a(f"""
    s_lshl_b32 {sT0}, {sW}, 6
    s_add_u32 {sT0}, {sT0}, {L_WQ}
    v_lshrrev_b32 {v(t1)}, 2, {v(vL)}
    v_lshl_add_u32 {v(t1)}, {v(t1)}, 8, {sT0}
    v_lshl_add_u32 {v(vTr)}, {v(cp)}, 4, {v(t1)}
    s_waitcnt lgkmcnt(0)
    s_cmp_eq_u32 {sW}, 3
    s_cselect_b32 s24, s{sUP}, s24
    s_cselect_b32 s25, s{sUP + 1}, s25
    """)
    wait(tag_wq)
    a("s_barrier")
    vmem(f"buffer_store_byte {v(vFb)}, {v(vFlag)}, {DBG_}, 0 offen sc1")
    stamp("wq")
    u = nk0
    while vm["n"] - vm["done"] < maxout:
        kload(u)
        u += 1
    for th in range(2):
        for sg in range(2):
            for eta in range(2):
                a(f"ds_read_b64_tr_b16 {ag(aWQ + 8 * th + 4 * sg + 2 * eta, 2)}, {v(vTr)} offset:{(32 * sg + 16 * eta) * 256 + 8 * th}")
    a(f"v_mov_b32 {v(t1)}, 0x3f803f80\nv_cmp_eq_u32 vcc, 0, {v(t0)}")
    for i in range(8):
        a(f"v_cndmask_b32 {v(XP + i)}, {v(t1)}, {v(XP + i)}, vcc")
    for i in range(8):
        a(f"v_lshlrev_b32 {v(XO + 2 * i)}, 16, {v(XP + i)}\nv_and_b32 {v(XO + 2 * i + 1)}, 0xffff0000, {v(XP + i)}")
    a("s_waitcnt lgkmcnt(0)")

    QD = Z
    SD = ACC + 8

    def qproj():
        for sg in range(2):
            for th in range(2):
                d = v(ACC + 4 * th, 4)
                mfma(d, ag(aWQ + 8 * th + 4 * sg, 4), v(XP + 4 * sg, 4), d if sg else "0")
        for sg in range(2):
            mfma(v(SD, 4), v(XP + 4 * sg, 4), v(XP + 4 * sg, 4), v(SD, 4) if sg else "0")
        for hf in range(2):
            for th in range(2):
                cvt(QD + 4 + 2 * hf + th, ACC + 4 * th + 2 * hf, ACC + 4 * th + 2 * hf + 1)

    def qpublish(layer):
        ad = vQst if layer else vQst0
        publish([("buffer_store_dwordx2", v(QD + 4, 2), ad, sTB[2 * layer], W_Q),
                 ("buffer_store_dwordx2", v(QD + 6, 2), ad, sTB[2 * layer], W_Q + 128),
                 ("buffer_store_dwordx2", v(SD, 2), vSTst, sTB[2 * layer + 1], W_SQ)])

    qproj()
    vCh, vCa = Z + 2, Z + 3
    CQ = Z + 8
    chk = f"buffer_load_dword {v(vCh)}, {v(vCa)}, {DBG_}, 0 offen sc1"
    a(f"v_lshlrev_b32 {v(vCa)}, 2, {v(vL)}")
    tag_chk = None
    while u < 32:
        if u >= chk_at and tag_chk is None:
            tag_chk = vmem(chk, True)
        if u == pub_at:
            wait(tag_chk)
            a(f"""
            L_chk:
            v_and_b32 {v(Z)}, 0x80808080, {v(vCh)}
            v_cmp_ne_u32 vcc, 0x80808080, {v(Z)}
            s_cbranch_vccnz L_chk_retry
            L_chk_ok:
            s_lshl_b32 {sT0}, {sT}, 1
            v_readlane_b32 {sT1}, {v(vCh)}, {sT0}
            s_add_u32 {sT0}, {sT0}, 1
            v_readlane_b32 {sT0}, {v(vCh)}, {sT0}
            s_mul_i32 {sMX}, {sMX}, 0x01010101
            s_xor_b32 {sT0}, {sT0}, {sMX}
            s_xor_b32 {sT1}, {sT1}, {sMX}
            s_or_b32 {sT0}, {sT0}, {sT1}
            s_cselect_b32 s46, 0, {WS_BYTES}
            s_cselect_b32 s50, {WS_BYTES}, 0
            """)
            tail(f"""
            L_chk_retry:
            {chk}
            {budget}
            s_waitcnt vmcnt(0)
            s_cbranch_scc0 L_chk
            s_branch L_chk_ok
            """)
            qpublish(0)
            stamp("qpub")
            a("s_barrier")
        tag_k = kload(u)
        u += 1

    qloads = lambda layer: [(4, QA, vQA, sTB[2 * layer], W_Q), (4, QA + 4, vQA, sTB[2 * layer], W_Q + 64),
                            (4, ST, vST, sTB[2 * layer + 1], W_SQ)]
    q0 = qloads(0) + [(4, CQ, vQA, sTB[1], W_COL), (4, CQ + 4, vQA, sTB[1], W_COL + 64)]
    q0txt = [f"buffer_load_dwordx4 {v(r, 4)}, {v(ad)}, {WS_}, {so} offen offset:{off} sc1" for _, r, ad, so, off in q0]
    vKr = [Z, Z + 1]
    a(f"""
    v_lshrrev_b32 {v(Z + 2)}, 1, {v(vC)}
    v_mul_u32_u24 {v(Z + 2)}, {KSLOT}, {v(Z + 2)}
    v_and_b32 {v(Z + 3)}, 1, v0
    v_mul_u32_u24 {v(Z + 3)}, 384, {v(Z + 3)}
    v_lshl_add_u32 {v(Z + 3)}, {v(vS)}, 4, {v(Z + 3)}
    v_add3_u32 {v(vKr[0])}, {v(Z + 2)}, {v(Z + 3)}, {sKL}
    v_xor_b32 {v(Z + 3)}, 128, {v(Z + 3)}
    v_add3_u32 {v(vKr[1])}, {v(Z + 2)}, {v(Z + 3)}, {sKL}
    """)
    tag_v = []
    kread_done = False
    for u in range(32):
        if u == qld_at:
            for tx in q0txt:
                tag_q = vmem(tx, True)
        r = VV + 16 * (u >> 2) + (0, 8, 4, 12)[u & 3]
        tag_v.append(vmem(f"s_mov_b32 {sSO}, {u * 4096}\nbuffer_load_dwordx4 {v(r, 4)}, {v(vKV)}, {V_}, {sSO} offen nt", True))
        if not kread_done and vm["done"] >= tag_k:
            kread_done = True
            stamp("kdone")
            n = 0
            for h in range(2):
                for be in range(2):
                    for b in range(2):
                        for sg in range(2):
                            for half in range(2):
                                a(f"ds_read_b128 {ag(aK + 16 * (4 * h + 2 * be + b) + 8 * sg + 4 * half, 4)}, {v(vKr[sg])} "
                                  f"offset:{(2 * h + b) * 8 * KSLOT + be * 512 + half * 64}")
                                n += 1
                                if n % 12 == 0:
                                    a("s_waitcnt lgkmcnt(3)")
    assert kread_done
    a(f"s_mul_i32 {sT1}, {sW}, {4 * 1088}")
    for i in range(4):
        tag_wo = dma(vWO, WO_, i * 8192, sT1, L_WQ + i * 1088)
    zero(ACC, 32)
    wait(tag_q)
    a("L_q0:")
    validate([r + i for _, r, _, _, _ in q0 for i in range(4)], Z)
    a("s_cbranch_vccnz L_q0_retry\ns_waitcnt lgkmcnt(0)")
    tail("L_q0_retry:\n" + "\n".join(q0txt) + f"\n{budget}\ns_waitcnt vmcnt(0)\ns_branch L_q0")
    stamp("q0")

    def qk(A, P):
        for sg in range(2):
            for tl in range(8):
                smf(v(ACC + 4 * tl, 4), v(A + 4 * sg, 4), ag(aK + 16 * tl + 8 * sg, 8), vIdxQ)
        for tl in range(8):
            d = ACC + 4 * tl
            a(f"v_pk_add_f32 {v(d, 2)}, {v(d, 2)}, {v(d + 2, 2)}")
            a(f"v_add_f32 {v(QA + tl)}, {v(d)}, {v(d + 1)}")
        for i in range(4):
            a(f"v_permlane32_swap_b32 {v(QA + i)}, {v(QA + 4 + i)}")
        a(f"v_pk_add_f32 {v(QA, 2)}, {v(QA, 2)}, {v(QA + 4, 2)}")
        a(f"v_pk_add_f32 {v(QA + 2, 2)}, {v(QA + 2, 2)}, {v(QA + 6, 2)}")
        for i in range(2):
            a(f"v_permlane16_swap_b32 {v(QA + i)}, {v(QA + 2 + i)}")
        a(f"v_pk_add_f32 {v(P, 2)}, {v(QA, 2)}, {v(QA + 2, 2)}")

    def stats(col, out, scale):
        a(f"v_pk_add_f32 {v(ST, 2)}, {v(ST, 2)}, {v(ST + 2, 2)}")
        for x in (XOR1, XOR2):
            dpp("v_add_f32", ST, ST, ST, x)
            dpp("v_add_f32", ST + 1, ST + 1, ST + 1, x)
        a(f"""
        v_mul_f32 {v(ST + 2)}, {f32(-1 / 512)}, {v(ST + 1)}
        v_fmamk_f32 {v(ST)}, {v(ST)}, {f32(1 / 512)}, {v(vEPS)}
        v_fma_f32 {v(ST)}, -{v(ST + 2)}, {v(ST + 2)}, {v(ST)}
        v_max_f32 {v(ST)}, {v(ST)}, {v(vEPS)}
        v_rsq_f32 {v(out)}, {v(ST)}
        v_pk_mul_f32 {v(out + 2, 2)}, {v(col, 2)}, {v(ST + 2, 2)} op_sel_hi:[1,0]
        """)
        if scale != 1:
            a(f"v_mul_f32 {v(out)}, {f32(scale)}, {v(out)}")
        a(f"v_pk_mul_f32 {v(out + 2, 2)}, {v(out + 2, 2)}, {v(out, 2)} op_sel_hi:[1,0]")

    def stage_x(g, ack=True):
        poll([(4, Z, vXld, sG[g], 0)], Z + 4)
        a(f"ds_write_b128 {v(vXSw)}, {v(Z, 4)}\ns_waitcnt lgkmcnt(0)\ns_barrier")
        for tau in range(4):
            for rho in range(2):
                a(f"ds_read_b64_tr_b16 {v(ACC + 4 * tau + 2 * rho, 2)}, {v(vXSr)} offset:{tau * 1024 + rho * 512}")

    def stage_x2(extra=0):
        for tau in range(4):
            a(f"s_waitcnt lgkmcnt({min(15, 6 - 2 * tau + extra)})")
            mfma(v(XO + 4 * tau, 4), v(ACC + 4 * tau, 4), ag(aONE, 4), v(XO + 4 * tau, 4))
        for i in range(8):
            cvt(XP + i, XO + 2 * i, XO + 2 * i + 1)

    LOG2E = 1.4426950408889634
    for layer in range(2):
        TB, TB1 = sTB[2 * layer], sTB[2 * layer + 1]
        P, AA, PD = Z, Z + 4, Z + 2
        if layer == 0:
            for i in range(8):
                a(f"v_swap_b32 {v(QA + i)}, {v(CQ + i)}")
            qk(QA, CK)
            zero(ACC, 32)
            qk(CQ, P)
        else:
            poll(qloads(1), Z, lambda: zero(ACC, 32))
            stamp("q1")
            qk(QA, P)
        stats(CK, AA, LOG2E * 128 ** -0.5)
        a(f"v_pk_fma_f32 {v(P, 2)}, {v(P, 2)}, {v(AA, 2)}, {v(AA + 2, 2)} op_sel_hi:[1,0,1]")
        OL, PA = ACC, ACC + 8
        mx = AA
        a(f"v_max_f32 {v(mx)}, {v(P)}, {v(P + 1)}")
        for x in (XOR1, XOR2, "row_half_mirror", "row_mirror"):
            dpp("v_max_f32", mx, mx, mx, x)
        dpp("v_max_f32", mx, mx, mx, "row_bcast:15", "0xa")
        dpp("v_max_f32", mx, mx, mx, "row_bcast:31", "0xc")
        a(f"v_readlane_b32 {sMX}, {v(mx)}, 63")
        zero(OL, 8)
        a(f"""
        v_subrev_f32 {v(P)}, {sMX}, {v(P)}
        v_subrev_f32 {v(P + 1)}, {sMX}, {v(P + 1)}
        v_exp_f32 {v(P)}, {v(P)}
        v_exp_f32 {v(P + 1)}, {v(P + 1)}
        v_mov_b32 {v(AA + 1)}, {sMX}
        """)
        cvt(PD, P, P)
        cvt(PD + 1, P + 1, P + 1)
        a(f"v_add_f32 {v(AA)}, {v(P)}, {v(P + 1)}\nds_write_b64 {v(vLM)}, {v(AA, 2)}")
        stamp(f"sm{layer}")
        LM = QA
        for m in range(8):
            A = PA + 4 * (m & 1)
            for q in range(4):
                dpp("v_and_b32", A + q, PD + (q & 1), vMaskP, f"row_newbcast:{2 * m + (q >> 1)}")
            R = VV + 16 * m
            if layer == 0:
                wait(tag_v[4 * m + 3])
                for x, y in ((2, 8), (3, 9), (6, 12), (7, 13)):
                    a(f"v_swap_b32 {v(R + x)}, {v(R + y)}")
            smf(v(OL, 4), v(A, 4), v(R, 8), vIdxP)
            smf(v(OL + 4, 4), v(A, 4), v(R + 8, 8), vIdxP)
            if m == 3:
                a(f"""
                s_waitcnt lgkmcnt(0)
                s_barrier
                ds_read2st64_b64 {v(LM, 4)}, {v(vOr)} offset0:4 offset1:5
                ds_read2st64_b64 {v(LM + 4, 4)}, {v(vOr)} offset0:6 offset1:7
                """)
        stamp(f"pv{layer}")
        MM = Z + 4
        a(f"""
        s_waitcnt lgkmcnt(0)
        v_max3_f32 {v(MM)}, {v(LM + 1)}, {v(LM + 3)}, {v(LM + 5)}
        v_max_f32 {v(MM)}, {v(MM)}, {v(LM + 7)}
        """)
        for i in range(4):
            a(f"v_sub_f32 {v(LM + 2 * i + 1)}, {v(LM + 2 * i + 1)}, {v(MM)}")
        a(f"""
        s_mov_b64 exec, 0xffff
        ds_write_b128 {v(vOw)}, {v(OL, 4)}
        ds_write_b128 {v(vOw)}, {v(OL + 4, 4)} offset:16
        s_mov_b64 exec, -1
        """)
        for i in range(4):
            a(f"v_exp_f32 {v(LM + 2 * i + 1)}, {v(LM + 2 * i + 1)}")
        LA, LB, LC, LX = [f"L_{n}{layer}" for n in ("w1", "w23", "hopa", "stx")]
        a(f"""
        s_cmp_lg_u32 {sW}, 0
        s_waitcnt lgkmcnt(0)
        s_barrier
        s_cbranch_scc1 {LA}
        ds_read2st64_b64 {v(OL, 4)}, {v(vOr)} offset0:0 offset1:1
        ds_read2st64_b64 {v(OL + 4, 4)}, {v(vOr)} offset0:2 offset1:3
        s_waitcnt lgkmcnt(1)
        v_pk_mul_f32 {v(OL, 2)}, {v(OL, 2)}, {v(LM, 2)} op_sel:[0,1]
        v_pk_fma_f32 {v(OL, 2)}, {v(OL + 2, 2)}, {v(LM + 2, 2)}, {v(OL, 2)} op_sel:[0,1,0]
        s_waitcnt lgkmcnt(0)
        v_pk_fma_f32 {v(OL, 2)}, {v(OL + 4, 2)}, {v(LM + 4, 2)}, {v(OL, 2)} op_sel:[0,1,0]
        v_pk_fma_f32 {v(OL, 2)}, {v(OL + 6, 2)}, {v(LM + 6, 2)}, {v(OL, 2)} op_sel:[0,1,0]
        """)
        cvt(OL, OL, OL + 1)
        save = dict(vm)
        publish([("buffer_store_dword", v(OL), vAst, TB, W_A)])
        stamp(f"apub{layer}")
        a(f"{LC}:")
        if layer == 0:
            a(f"""
            v_mul_u32_u24 {v(vTr)}, 1088, {v(vS)}
            v_bfe_u32 {v(Z)}, v0, 2, 2
            v_lshl_add_u32 {v(vTr)}, {v(Z)}, 7, {v(vTr)}
            v_and_b32 {v(Z)}, 3, v0
            v_lshl_add_u32 {v(vTr)}, {v(Z)}, 3, {v(vTr)}
            s_lshl_b32 {sT0}, {sW}, 6
            s_add_u32 {sT0}, {sT0}, {L_WQ}
            v_add_u32 {v(vTr)}, {sT0}, {v(vTr)}
            """)
            wait(tag_wo)
            a("s_barrier")
            for th in range(2):
                for sg in range(2):
                    for eta in range(2):
                        for ka in range(2):
                            a(f"ds_read_b64_tr_b16 {ag(aWO + 16 * th + 8 * sg + 4 * eta + 2 * ka, 2)}, {v(vTr)} "
                              f"offset:{(8 * sg + 4 * eta) * 1088 + ka * 512 + th * 32}")
                if th == 0:
                    a("s_waitcnt lgkmcnt(4)")
        ML = ST
        DD = ACC + 8
        poll([(4, QA, vQA, TB, W_A), (4, QA + 4, vQA, TB, W_A + 64), (2, ML, vMLld, TB1, W_ML)], Z, lambda: zero(DD, 8))
        stamp(f"a{layer}")
        if layer == 0:
            a("s_waitcnt lgkmcnt(0)")
        for sg in range(2):
            for th in range(2):
                smf(v(DD + 4 * th, 4), v(QA + 4 * sg, 4), ag(aWO + 16 * th + 8 * sg, 8), vIdxQ)
        F, LT = Z, Z + 1
        dpp("v_max_f32", F, ML, ML, XOR1)
        dpp("v_max_f32", F, F, F, XOR2)
        dpp("v_max_f32", F, F, F, "row_half_mirror")
        a(f"""
        v_sub_f32 {v(F)}, {v(ML)}, {v(F)}
        v_exp_f32 {v(F)}, {v(F)}
        v_mul_f32 {v(LT)}, {v(F)}, {v(ML + 1)}
        """)
        for th in range(2):
            a(f"v_pk_add_f32 {v(DD + 4 * th, 2)}, {v(DD + 4 * th, 2)}, {v(DD + 4 * th + 2, 2)}")
        dpp("v_add_f32", LT, LT, LT, XOR1)
        for th in range(2):
            dpp("v_mul_f32", DD + 4 * th, F, DD + 4 * th, "row_newbcast:0")
        dpp("v_add_f32", LT, LT, LT, XOR2)
        for th in range(2):
            dpp("v_fmac_f32", DD + 4 * th, F, DD + 4 * th + 1, "row_newbcast:1")
        dpp("v_add_f32", LT, LT, LT, "row_half_mirror")
        a(f"""
        v_permlane32_swap_b32 {v(DD)}, {v(DD + 4)}
        v_rcp_f32 {v(LT)}, {v(LT)}
        v_add_f32 {v(DD + 1)}, {v(DD)}, {v(DD + 4)}
        v_add_f32 {v(DD)}, {v(DD)}, {v(DD + 4)}
        v_permlane16_swap_b32 {v(DD)}, {v(DD + 1)}
        v_add_f32 {v(DD)}, {v(DD)}, {v(DD + 1)}
        v_mul_f32 {v(DD)}, {v(DD)}, {v(LT)}
        """)
        dpp("v_mov_b32", DD + 1, DD, None, XOR1)
        cvt(DD, DD, DD + 1)
        vmem(f"buffer_store_dword {v(DD)}, {v(vBst)}, {WS_}, {sG[2 * layer]} offen sc1")
        stamp(f"bpub{layer}")
        waitall()
        a(f"{LX}:\ns_barrier")

        main, a_lines = a.lines, []
        a.lines = a_lines
        vm.update(save)
        a(f"""
        {LA}:
        s_cmp_lg_u32 {sW}, 1
        s_cbranch_scc1 {LB}
        v_mul_f32 {v(MM + 1)}, {v(LM)}, {v(LM + 1)}
        v_fmac_f32 {v(MM + 1)}, {v(LM + 2)}, {v(LM + 3)}
        v_fmac_f32 {v(MM + 1)}, {v(LM + 4)}, {v(LM + 5)}
        v_fmac_f32 {v(MM + 1)}, {v(LM + 6)}, {v(LM + 7)}
        """)
        for x in (XOR1, XOR2, "row_half_mirror", "row_mirror"):
            dpp("v_add_f32", MM + 1, MM + 1, MM + 1, x)
        dpp("v_add_f32", MM + 1, MM + 1, MM + 1, "row_bcast:15", "0xa")
        dpp("v_add_f32", MM + 1, MM + 1, MM + 1, "row_bcast:31", "0xc")
        publish([("buffer_store_dwordx2", v(MM, 2), vMLst, TB1, W_ML)])
        a(f"s_branch {LC}\n{LB}:")
        if layer == 0:
            vm.update(save)
            a(f"""
            s_cmp_eq_u32 {sW}, 3
            s_cselect_b32 {sT0}, {L_UP - L_GT}, 0
            s_cselect_b32 {sT1}, 3072, 0
            """)
            for i in range(6):
                dma(GUA + i % 3, GU_, (i // 3) * 32 * 2752, sT0, L_GT + i * 1024, False)
            for i in range(3):
                dma(vDN, DN_, i * 8192, sT1, L_DN + i * 1024, False)
            wait(tag_wo)
            a("s_barrier")
        a(f"s_branch {LX}")
        tail.lines += a_lines
        a.lines = main
        vm["done"] = -1

        stage_x(2 * layer)
        stamp(f"b{layer}")
        if layer == 0:
            a(f"""
            v_lshrrev_b32 {v(Z)}, 2, {v(vL)}
            v_mul_u32_u24 {v(Z)}, 96, {v(Z)}
            v_and_b32 {v(Z + 1)}, 3, v0
            v_lshlrev_b32 {v(Z + 1)}, 3, {v(Z + 1)}
            s_lshl_b32 {sT0}, {sW}, 5
            s_add_u32 {sT1}, {sT0}, {L_GT}
            v_add3_u32 {v(vTr)}, {v(Z)}, {v(Z + 1)}, {sT1}
            s_waitcnt lgkmcnt(4)
            """)
            for sg in range(2):
                for mt in range(2):
                    for eta in range(2):
                        a(f"ds_read_b64_tr_b16 {ag(aGU + 8 * mt + 4 * sg + 2 * eta, 2)}, {v(vTr)} "
                          f"offset:{(32 * sg + 16 * eta) * 96 + mt * (L_UP - L_GT)}")
            stage_x2(8)
            a(f"""
            v_bfe_u32 {v(Z)}, v0, 2, 2
            v_lshl_add_u32 {v(Z)}, {v(vS)}, 3, {v(Z)}
            v_lshl_add_u32 {v(Z)}, {v(Z)}, 7, {v(Z + 1)}
            s_add_u32 {sT1}, {sT0}, {L_DN}
            v_add_u32 {v(vTr)}, {sT1}, {v(Z)}
            s_waitcnt lgkmcnt(0)
            """)
            for eta in range(2):
                for ka in range(2):
                    a(f"ds_read_b64_tr_b16 {ag(aDN + 4 * eta + 2 * ka, 2)}, {v(vTr)} offset:{eta * 4096 + ka * 512}")
        else:
            stage_x2()
        GD = ACC + 16
        for sg in range(2):
            for mt in range(2):
                d = v(GD + 4 * mt, 4)
                mfma(d, v(XP + 4 * sg, 4), ag(aGU + 8 * mt + 4 * sg, 4), d if sg else "0")
        for sg in range(2):
            mfma(v(GD + 8, 4), v(XP + 4 * sg, 4), v(XP + 4 * sg, 4), v(GD + 8, 4) if sg else "0")
        cvt(Z, GD, GD + 4)
        st = [("buffer_store_dword", v(Z), vCst, TB1, W_C)]
        if layer == 0:
            cvt(Z + 1, GD + 1, GD + 5)
            st.append(("buffer_store_dword", v(Z + 1), vCst, sTB[3], W_COL))
        st.append(("buffer_store_dwordx2", v(GD + 8, 2), vSTst, TB1, W_SC))
        publish(st)
        stamp(f"cpub{layer}")
        ld = [(4, QA, vCld, TB1, W_C), (4, QA + 4, vCld, TB1, W_C + 16), (4, ST, vST, TB1, W_SC)]
        if layer == 0:
            ld += [(4, CQ, vCld, sTB[3], W_COL), (4, CQ + 4, vCld, sTB[3], W_COL + 16)]
        HD, GU = ACC, ACC + 4
        poll(ld, Z + 2, lambda: zero(HD, 4))
        stamp(f"c{layer}")
        if layer == 0:
            mfma(v(GU + 4, 4), ag(aDEL, 4), v(CQ, 4), "0")
            mfma(v(GU + 4, 4), ag(aDEL, 4), v(CQ + 4, 4), v(GU + 4, 4))
        mfma(v(GU, 4), ag(aDEL, 4), v(QA, 4), "0")
        mfma(v(GU, 4), ag(aDEL, 4), v(QA + 4, 4), v(GU, 4))
        if layer == 0:
            a(f"v_mov_b64 {v(CG, 2)}, {v(GU + 4, 2)}")
        stats(CG, AA, 1)
        a(f"""
        v_pk_fma_f32 {v(GU, 2)}, {v(GU, 2)}, {v(AA, 2)}, {v(AA + 2, 2)} op_sel_hi:[1,0,1]
        v_mul_f32 {v(Z)}, {f32(-LOG2E)}, {v(GU)}
        v_exp_f32 {v(Z)}, {v(Z)}
        v_mul_f32 {v(GU)}, {v(GU)}, {v(GU + 1)}
        v_add_f32 {v(Z)}, 1.0, {v(Z)}
        v_rcp_f32 {v(Z)}, {v(Z)}
        v_mul_f32 {v(GU)}, {v(GU)}, {v(Z)}
        """)
        cvt(GU, GU, GU)
        for q in range(4):
            a(f"v_and_b32 {v(QA + q)}, {v(GU)}, {v(MD + q)}")
        if layer == 0:
            a("s_waitcnt lgkmcnt(0)")
        smf(v(HD, 4), v(QA, 4), ag(aDN, 8), vIdxP)
        a(f"""
        v_pk_add_f32 {v(HD, 2)}, {v(HD, 2)}, {v(HD + 2, 2)}
        v_add_f32 {v(HD + 2)}, {v(HD)}, {v(HD + 1)}
        v_add_f32 {v(HD + 3)}, {v(HD)}, {v(HD + 1)}
        v_permlane32_swap_b32 {v(HD + 2)}, {v(HD + 3)}
        v_add_f32 {v(HD)}, {v(HD + 2)}, {v(HD + 3)}
        v_add_f32 {v(HD + 1)}, {v(HD + 2)}, {v(HD + 3)}
        v_permlane16_swap_b32 {v(HD)}, {v(HD + 1)}
        v_add_f32 {v(HD)}, {v(HD)}, {v(HD + 1)}
        """)
        dpp("v_mov_b32", HD + 1, HD, None, XOR1)
        cvt(HD, HD, HD + 1)
        vmem(f"buffer_store_dword {v(HD)}, {v(vDst)}, {WS_}, {sG[2 * layer + 1]} offen sc1")
        stamp(f"dpub{layer}")
        if layer == 1:
            a(f"s_cmp_lg_u32 {sT}, 0\ns_cbranch_scc1 L_fin")
        waitall()
        stage_x(2 * layer + 1)
        stamp(f"d{layer}")
        stage_x2()
        if layer == 0:
            qproj()
            qpublish(1)
            stamp("qpub1")
        else:
            for tau in range(4):
                vmem(f"buffer_store_dwordx2 {v(XP + 2 * tau, 2)}, {v(vOUT)}, {OUT_}, 0 offen offset:{32 * tau}")
    a("L_fin:")
    if names:
        stamp("end")
        a(f"s_waitcnt lgkmcnt(0)\ns_cmp_lg_u32 {sW}, {stamp_wave}\ns_cbranch_scc1 L_end")
        for k in range(len(names)):
            a(f"v_writelane_b32 {v(Z)}, s{S_STAMP + 2 * k}, {k}")
        a(f"""
        s_lshl_b32 {sT0}, s2, 7
        s_add_u32 {sT0}, {sT0}, 0x8000000
        v_lshl_add_u32 {v(Z + 1)}, {v(vL)}, 2, {sT0}
        s_mov_b64 exec, 0xffff
        buffer_store_dword {v(Z)}, {v(Z + 1)}, {WS_}, 0 offen
        """)
    a("L_end:\ns_endpgm")
    lines, nops = pad(a.lines + tail.lines)
    return wrap("\n".join(lines), 256, 256, LDS), names, nops


if __name__ == "__main__":
    out = sys.argv[1]
    kw = eval("dict(" + (sys.argv[2] if len(sys.argv) > 2 else "") + ")")
    txt, names, nops = gen(**kw)
    open(out, "w").write(txt)
    print(out, "stamps:", names, "nops:", nops)
```

```python
import struct
import sys
sys.path.insert(0, "gen")
from asmlib import *
from hazard import pad

KSLOT = 1040
KAREA = 32 * KSLOT
L_WQ = 4 * KAREA
L_XS = L_WQ + 16 * 1088
L_O = L_XS + 4096
L_LM = L_O + 2048
L_GT = 2 * KAREA
L_DN = 3 * KAREA - 3072
L_UP = L_DN + 6144
LDS = 160 * 1024

W_Q, W_A = 0, 2048
W_C, W_SQ, W_ML, W_SC, W_COL = 0, 1536, 1664, 1792, 2048
W_G = 32 * 16384
WS_BYTES = 0x10000000
OOB = 0x80000000

X_, K_, V_, WQ_, WO_, GU_, DN_, OUT_, DBG_, WS_, WSP_, WSN_ = [f"s[{4 * i}:{4 * i + 3}]" for i in range(1, 13)]
sT, sJ, sW, sKL, sT0, sT1, sSO, sSP, sTHR, sMX = [f"s{i}" for i in range(52, 62)]
sTB = ["s62", "s63", "s64", "s65"]
sG = ["s66", "s67", "s68", "s69"]
sUP = 70
S_STAMP = 72


def f32(x):
    return "0x%08x" % struct.unpack("<I", struct.pack("<f", x))[0]


class VAlloc:
    def __init__(self, lo):
        self.n = lo

    def __call__(self, n=1, al=1):
        self.n = (self.n + al - 1) // al * al
        r = self.n
        self.n += n
        return r


def gen(stamps=None, stamp_wave=0, maxout=16, chk_at=16, pub_at=28, qld_at=12, clk=False, calib=None):
    a = Asm()
    va = VAlloc(1)
    v = lambda r, n=1: vr(r, n)
    ag = lambda r, n=1: vr(r, n, "a")
    vL, vC, vS = va(), va(), va()
    vKV, vK, vWO, vDN = va(), va(), va(), va()
    vQst, vQst0, vQA, vST, vSTst = va(), va(), va(), va(), va()
    vIdxQ, vIdxP, vMaskP = va(), va(), va()
    XO = va(16, 4)
    XP = va(8, 4)
    CK = va(2, 2)
    CG = va(2, 2)
    vOw, vLM, vOr, vAst, vMLst, vMLld, vBst, vXld, vXSr = [va() for _ in range(9)]
    vCst, vCld, vDst, vEPS, vXSw, vOUT = [va() for _ in range(6)]
    MD = va(4)
    GUA = va(3)
    vTr = va()
    T = va(0, 4)
    NT = 128 - T
    ACC = T
    QA = T + 32
    ST = T + 40
    Z = T + 44
    assert NT >= 60, NT
    VV = 128
    aK, aWQ, aWO, aGU, aDN, aONE, aDEL = 0, 128, 144, 176, 192, 200, 204

    names = []

    def stamp(name):
        if stamps is not None and (stamps == "all" or name in stamps):
            k = len(names)
            assert k < 15
            names.append(name)
            a(f"{'s_memtime' if clk else 's_memrealtime'} s[{S_STAMP + 2 * k}:{S_STAMP + 2 * k + 1}]")

    vm = dict(n=0, done=0)

    def vmem(text, throttle=False):
        if throttle and vm["n"] - vm["done"] >= maxout:
            wait(vm["n"] - maxout + 1)
        a(text)
        vm["n"] += 1
        return vm["n"]

    def wait(tag):
        if tag > vm["done"]:
            assert vm["n"] - tag <= 63
            a(f"s_waitcnt vmcnt({vm['n'] - tag})")
            vm["done"] = tag

    def waitall():
        a("s_waitcnt vmcnt(0)")
        vm["done"] = vm["n"]

    def dma(vaddr, srd, soff, m0base, ldsoff, throttle=True):
        pre = f"s_add_u32 m0, {m0base}, {ldsoff}\ns_mov_b32 {sSO}, {soff}\n"
        return vmem(pre + f"buffer_load_dwordx4 {v(vaddr)}, {srd}, {sSO} offen nt lds", throttle)

    def publish(stores):
        for srd, fl in ((WSP_, ""), (WSN_, " sc1")):
            for op, data, addr, so, off in stores:
                vmem(f"{op} {data}, {v(addr)}, {srd}, {so} offen offset:{off}{fl}")

    def validate(regs, tmp):
        a(f"v_max3_u32 {v(tmp)}, {v(regs[0])}, {v(regs[1])}, {v(regs[2])}")
        rest = regs[3:]
        while len(rest) >= 2:
            a(f"v_max3_u32 {v(tmp)}, {v(tmp)}, {v(rest[0])}, {v(rest[1])}")
            rest = rest[2:]
        if rest:
            a(f"v_max_u32 {v(tmp)}, {v(tmp)}, {v(rest[0])}")
        a(f"v_cmp_lt_u32 vcc, {sTHR}, {v(tmp)}")

    budget = f"s_add_u32 {sSP}, {sSP}, 0x10000\ns_cselect_b32 {sTHR}, -1, {sTHR}"
    tail = Asm()

    def poll(loads, tmp, shadow=None):
        lab = a.label("poll")
        a(f"{lab}:")
        regs = []
        for n, r, addr, so, off in loads:
            op = {1: "dword", 2: "dwordx2", 4: "dwordx4"}[n]
            vmem(f"buffer_load_{op} {v(r, n)}, {v(addr)}, {WS_}, {so} offen offset:{off} sc1")
            regs += list(range(r, r + n))
        a(budget)
        if shadow:
            shadow()
        waitall()
        validate(regs, tmp)
        a(f"s_cbranch_vccnz {lab}")

    def dpp(op, d, s0, s1, ctrl, rm="0xf"):
        srcs = v(s0) if s1 is None else f"{v(s0)}, {v(s1)}"
        a(f"{op}_dpp {v(d)}, {srcs} {ctrl} row_mask:{rm} bank_mask:0xf")

    XOR1, XOR2 = "quad_perm:[1,0,3,2]", "quad_perm:[2,3,0,1]"

    def mfma(d, A, B, C):
        a(f"v_mfma_f32_16x16x32_bf16 {d}, {A}, {B}, {C}")

    def smf(d, A, B, idx):
        a(f"v_smfmac_f32_16x16x64_bf16 {d}, {A}, {B}, {v(idx)}")

    def cvt(d, x, y):
        a(f"v_cvt_pk_bf16_f32 {v(d)}, {v(x)}, {v(y)}")

    def zero(r, n):
        for i in range(0, n, 2):
            a(f"v_mov_b64 {v(r + i, 2)}, 0")

    a(f"""
    s_cmp_ge_u32 s2, 256
    s_cbranch_scc1 L_end
    s_load_dwordx2 s[40:41], s[0:1], 88
    s_load_dwordx2 s[4:5], s[0:1], 0
    s_load_dwordx2 s[16:17], s[0:1], 24
    s_load_dwordx2 s[8:9], s[0:1], 8
    s_load_dwordx2 s[12:13], s[0:1], 16
    s_load_dwordx2 s[36:37], s[0:1], 80
    """)
    stamp("start")
    a(f"""
    s_and_b32 {sT0}, s2, 7
    s_lshr_b32 {sT1}, s2, 6
    s_lshl2_add_u32 {sT}, {sT0}, {sT1}
    s_bfe_u32 {sJ}, s2, 0x30003
    v_lshrrev_b32 {v(Z)}, 6, v0
    v_and_b32 {v(vL)}, 63, v0
    v_readfirstlane_b32 {sW}, {v(Z)}
    v_and_b32 {v(vC)}, 15, v0
    v_bfe_u32 {v(vS)}, v0, 4, 2
    v_lshlrev_b32 {v(vXld)}, 4, v0
    s_lshl_b32 {sTB[0]}, {sT}, 14
    s_lshl_b32 {sT0}, {sJ}, 11
    s_add_u32 {sT0}, {sT0}, {sTB[0]}
    s_lshl_b32 {sT1}, s2, 9
    s_add_u32 {sT1}, {sT1}, {W_G - 2048}
    s_cmp_lt_u32 {sW}, 2
    s_cselect_b32 {sT0}, {sT0}, {sT1}
    v_add_u32 {v(Z)}, {sT0}, {v(vXld)}
    v_mov_b32 {v(Z + 1)}, {OOB}
    v_cmp_gt_u32 vcc, 160, v0
    v_mov_b32 {v(Z + 4)}, -1
    v_mov_b32 {v(Z + 5)}, -1
    v_mov_b32 {v(Z + 6)}, -1
    v_mov_b32 {v(Z + 7)}, -1
    v_cndmask_b32 {v(Z)}, {v(Z + 1)}, {v(Z)}, vcc
    s_lshl_b32 {sT0}, {sJ}, 7
    v_lshl_add_u32 {v(Z + 2)}, {v(vS)}, 3, {sT0}
    s_lshl_b32 {sT0}, {sT}, 20
    s_lshl_b32 {sT1}, {sJ}, 17
    s_add_u32 {sT0}, {sT0}, {sT1}
    v_add_u32 {v(vKV)}, {sT0}, {v(vXld)}
    v_and_b32 {v(vK)}, 16, v0
    v_lshlrev_b32 {v(vK)}, 3, {v(vK)}
    v_xor_b32 {v(vK)}, {v(vK)}, {v(vKV)}
    s_lshl_b32 {sT0}, {sJ}, 19
    s_lshl_b32 {sT1}, {sW}, 17
    s_add_u32 {sT0}, {sT0}, {sT1}
    s_lshl_b32 {sT1}, {sT}, 8
    s_add_u32 {sT0}, {sT0}, {sT1}
    v_lshl_add_u32 {v(Z + 3)}, {v(vS)}, 13, {sT0}
    v_lshl_add_u32 {v(Z + 3)}, {v(vC)}, 4, {v(Z + 3)}
    s_mul_i32 {sKL}, {sW}, {KAREA}
    s_lshl_b32 {sT1}, {sW}, 12
    s_mov_b32 s42, {WS_BYTES}
    s_mov_b32 s43, 0x20000
    s_mov_b32 s6, 1024
    s_mov_b32 s7, 0x20000
    s_mov_b32 s18, 0x400000
    s_mov_b32 s19, 0x20000
    s_mov_b32 s10, 0x2000000
    s_mov_b32 s11, 0x20000
    s_waitcnt lgkmcnt(0)
    """)
    vmem(f"buffer_store_dwordx4 {v(Z + 4, 4)}, {v(Z)}, {WS_}, 0 offen sc1")
    for tau in range(4):
        vmem(f"buffer_load_dwordx2 {v(XP + 2 * tau, 2)}, {v(Z + 2)}, {X_}, 0 offen offset:{32 * tau}")
    for i in range(4):
        tag_wq = dma(Z + 3, WQ_, i * 4 * 8192, sT1, L_WQ + i * 1024)

    def kload(u):
        return dma(vK, K_, u * 4096, sKL, (8 * (u & 3) + (u >> 2)) * KSLOT)

    nk0 = maxout - vm["n"]
    for u in range(nk0):
        kload(u)

    a(f"""
    s_load_dwordx2 s[20:21], s[0:1], 32
    s_load_dwordx2 s[24:25], s[0:1], 48
    s_load_dwordx2 s[{sUP}:{sUP + 1}], s[0:1], 56
    s_load_dwordx2 s[28:29], s[0:1], 64
    s_load_dwordx2 s[32:33], s[0:1], 72
    s_mov_b32 s14, 0x2000000
    s_mov_b32 s15, 0x20000
    s_mov_b32 s22, 0x400000
    s_mov_b32 s23, 0x20000
    s_mov_b32 s26, {512 * 2752}
    s_mov_b32 s27, 0x20000
    s_mov_b32 s30, {1376 * 1024}
    s_mov_b32 s31, 0x20000
    s_mov_b32 s34, 1024
    s_mov_b32 s35, 0x20000
    s_mov_b32 s38, 256
    s_mov_b32 s39, 0x20000
    s_mov_b32 s44, s40
    s_mov_b32 s45, s41
    s_mov_b32 s47, 0x20000
    s_mov_b32 s48, s40
    s_mov_b32 s49, s41
    s_mov_b32 s51, 0x20000
    s_mov_b32 {sSP}, 0
    s_mov_b32 {sTHR}, -2
    s_add_u32 {sTB[1]}, {sTB[0]}, 4096
    s_add_u32 {sTB[2]}, {sTB[0]}, 8192
    s_add_u32 {sTB[3]}, {sTB[0]}, 12288
    s_lshl_b32 {sG[0]}, {sJ}, 12
    s_add_u32 {sG[0]}, {sG[0]}, {W_G}
    s_add_u32 {sG[1]}, {sG[0]}, 0x8000
    s_add_u32 {sG[2]}, {sG[0]}, 0x10000
    s_add_u32 {sG[3]}, {sG[0]}, 0x18000
    """)
    O_ = Z + 1
    r_, cp = Z + 8, Z + 9
    t0, t1, t2 = Z + 10, Z + 11, Z + 12
    vFlag, vFb = Z + 2, Z + 3

    def sel(d, cond, x, y=None):
        a(f"{cond}\nv_cndmask_b32 {v(d)}, {v(O_ if y is None else y)}, {v(x)}, vcc")

    a(f"""
    v_bfe_u32 {v(r_)}, v0, 2, 2
    v_and_b32 {v(cp)}, 3, v0
    s_getreg_b32 {sMX}, hwreg(HW_REG_XCC_ID, 0, 4)
    s_or_b32 {sMX}, {sMX}, 0x80
    s_lshl3_add_u32 {sT0}, {sT}, {sJ}
    v_mov_b32 {v(t0)}, {sT0}
    v_mov_b32 {v(vFb)}, {sMX}
    """)
    sel(vFlag, "v_cmp_eq_u32 vcc, 0, v0", t0)
    a(f"""
    s_lshl_b32 {sT0}, {sJ}, 8
    s_lshl_b32 {sT1}, {sW}, 5
    s_add_u32 {sT1}, {sT1}, {sT0}
    v_lshl_add_u32 {v(t0)}, {v(vS)}, 3, {sT1}
    v_add_u32 {v(t1)}, {4096 + W_COL}, {v(t0)}
    """)
    sel(vQst, f"v_cmp_eq_u32 vcc, 0, {v(vC)}", t0)
    sel(vQst0, f"v_cmp_eq_u32 vcc, 1, {v(vC)}", t1, vQst)
    a(f"""
    v_and_b32 {v(t0)}, 1, v0
    v_lshl_add_u32 {v(t1)}, {v(t0)}, 7, {sT0}
    v_lshrrev_b32 {v(t2)}, 1, {v(vL)}
    v_lshl_add_u32 {v(vAst)}, {v(t2)}, 2, {v(t1)}
    """)
    a(f"""
    v_lshl_add_u32 {v(t1)}, {v(r_)}, 1, {v(t0)}
    v_lshlrev_b32 {v(t1)}, 8, {v(t1)}
    v_lshl_add_u32 {v(t1)}, {v(vS)}, 4, {v(t1)}
    v_bfe_u32 {v(t2)}, v0, 1, 1
    v_lshl_add_u32 {v(vQA)}, {v(t2)}, 7, {v(t1)}
    v_mul_u32_u24 {v(t2)}, 0xaaaa, {v(t2)}
    v_add_u32 {v(vIdxQ)}, 0x4444, {v(t2)}
    v_lshlrev_b32 {v(vST)}, 4, {v(cp)}
    s_lshl_b32 {sT0}, {sJ}, 3
    v_mov_b32 {v(t1)}, {sT0}
    """)
    sel(vSTst, "v_cmp_eq_u32 vcc, 192, v0", t1)
    sel(vMLst, f"v_cmp_eq_u32 vcc, 63, {v(vL)}", t1)
    a(f"""
    v_lshl_add_u32 {v(t1)}, {v(vS)}, 1, {v(vC)}
    v_and_b32 {v(t1)}, 7, {v(t1)}
    v_lshlrev_b32 {v(vMLld)}, 3, {v(t1)}
    v_mov_b32 {v(t1)}, 0x0000ffff
    v_mov_b32 {v(t2)}, 0xffff0000
    v_cmp_eq_u32 vcc, 3, {v(cp)}
    v_cndmask_b32 {v(vMaskP)}, {v(t1)}, {v(t2)}, vcc
    v_cndmask_b32 {v(t1)}, {v(cp)}, 0, vcc
    v_or_b32 {v(t1)}, 12, {v(t1)}
    v_mul_u32_u24 {v(vIdxP)}, 0x1111, {v(t1)}
    """)
    a(f"""
    s_mul_i32 {sT0}, {sT}, 48
    s_sub_i32 {sT0}, 1376, {sT0}
    s_min_i32 {sT0}, {sT0}, 48
    v_cmp_gt_i32 vcc, {sT0}, {v(vL)}
    v_cndmask_b32 {v(t1)}, 0, {v(vMaskP)}, vcc
    """)
    for q in range(4):
        a(f"v_cmp_eq_u32 vcc, {q}, {v(r_)}\nv_cndmask_b32 {v(MD + q)}, 0, {v(t1)}, vcc")
    a(f"""
    v_mov_b32 {v(t1)}, 0x3f803f80
    v_cmp_eq_u32 vcc, 0, {v(t0)}
    v_cndmask_b32 {v(t1)}, 0, {v(t1)}, vcc
    v_lshlrev_b32 {v(t2)}, 4, {v(cp)}
    v_mov_b32 {v(Z + 13)}, 0x3f80
    v_lshlrev_b32 {v(t2)}, {v(t2)}, {v(Z + 13)}
    v_cmp_gt_u32 vcc, 2, {v(cp)}
    v_cndmask_b32 {v(t2)}, 0, {v(t2)}, vcc
    v_cmp_eq_u32 vcc, {v(r_)}, {v(vS)}
    v_cndmask_b32 {v(t2)}, 0, {v(t2)}, vcc
    """)
    for i in range(4):
        a(f"v_accvgpr_write_b32 {ag(aONE + i)}, {v(t1)}\nv_accvgpr_write_b32 {ag(aDEL + i)}, {v(t2)}")
    a(f"""
    s_lshl_b32 {sT0}, {sW}, 9
    s_add_u32 {sT1}, {sT0}, {L_O}
    v_lshl_add_u32 {v(vOw)}, {v(vC)}, 5, {sT1}
    s_add_u32 {sT1}, {sT0}, {L_LM}
    v_lshl_add_u32 {v(vLM)}, {v(vL)}, 3, {sT1}
    v_lshlrev_b32 {v(t1)}, 3, {v(vL)}
    v_add_u32 {v(vOr)}, {L_O}, {v(t1)}
    v_add_u32 {v(vXSr)}, {L_XS}, {v(t1)}
    v_add_u32 {v(vXSw)}, {L_XS}, {v(vXld)}
    v_mov_b32 {v(vEPS)}, {f32(1e-5)}
    """)
    a(f"""
    s_lshl_b32 {sT0}, {sT}, 5
    v_lshl_add_u32 {v(t1)}, {v(vC)}, 1, {sT0}
    s_lshl_b32 {sT0}, {sW}, 10
    v_add_u32 {v(t2)}, {sT0}, {v(t1)}
    v_and_b32 {v(Z + 13)}, 49, v0
    """)
    sel(vDst, f"v_cmp_eq_u32 vcc, 0, {v(Z + 13)}", t2)
    a(f"""
    v_lshrrev_b32 {v(t2)}, 5, v0
    v_lshl_add_u32 {v(t2)}, {v(t2)}, 10, {v(t1)}
    v_and_b32 {v(Z + 13)}, 17, v0
    """)
    sel(vBst, f"v_cmp_eq_u32 vcc, 0, {v(Z + 13)}", t2)
    a(f"""
    s_lshl_b32 {sT0}, {sW}, 9
    s_lshl2_add_u32 {sT0}, {sJ}, {sT0}
    s_cmp_lt_u32 {sW}, 3
    s_cselect_b32 {sT0}, {sT0}, {OOB}
    v_lshl_add_u32 {v(t1)}, {v(vC)}, 5, {sT0}
    """)
    sel(vCst, f"v_cmp_eq_u32 vcc, 0, {v(vS)}", t1)
    a(f"""
    v_min_u32 {v(t1)}, 47, {v(vL)}
    v_lshlrev_b32 {v(vCld)}, 5, {v(t1)}
    s_lshl_b32 {sT0}, {sJ}, 7
    v_lshl_add_u32 {v(t1)}, {v(vS)}, 3, {sT0}
    v_and_b32 {v(Z + 13)}, 0xcf, v0
    """)
    sel(vOUT, f"v_cmp_eq_u32 vcc, 0, {v(Z + 13)}", t1)
    a(f"""
    v_lshrrev_b32 {v(t1)}, 3, {v(vL)}
    v_lshl_add_u32 {v(t1)}, {v(t1)}, 10, {sT0}
    v_and_b32 {v(t2)}, 7, v0
    v_lshl_add_u32 {v(t1)}, {v(t2)}, 4, {v(t1)}
    s_lshl_b32 {sT0}, {sT}, 17
    s_lshl_b32 {sT1}, {sW}, 15
    s_add_u32 {sT0}, {sT0}, {sT1}
    v_add_u32 {v(vWO)}, {sT0}, {v(t1)}
    s_and_b32 {sT1}, {sW}, 1
    s_lshl1_add_u32 {sT0}, {sT}, {sT1}
    s_mul_i32 {sT0}, {sT0}, {24 * 1024}
    v_add_u32 {v(vDN)}, {sT0}, {v(t1)}
    s_mul_i32 {sT0}, {sJ}, {64 * 2752}
    s_mul_i32 {sT1}, {sT}, 96
    s_add_u32 {sT0}, {sT0}, {sT1}
    """)
    for i in range(3):
        a(f"""
        v_add_u32 {v(t1)}, {64 * i}, {v(vL)}
        v_mul_u32_u24 {v(t2)}, 10923, {v(t1)}
        v_lshrrev_b32 {v(t2)}, 16, {v(t2)}
        v_mul_u32_u24 {v(t2)}, {2752 - 96}, {v(t2)}
        v_lshl_add_u32 {v(t2)}, {v(t1)}, 4, {v(t2)}
        v_add_u32 {v(GUA + i)}, {sT0}, {v(t2)}
        """)
    a(f"""
    s_lshl_b32 {sT0}, {sW}, 6
    s_add_u32 {sT0}, {sT0}, {L_WQ}
    v_lshrrev_b32 {v(t1)}, 2, {v(vL)}
    v_lshl_add_u32 {v(t1)}, {v(t1)}, 8, {sT0}
    v_lshl_add_u32 {v(vTr)}, {v(cp)}, 4, {v(t1)}
    s_waitcnt lgkmcnt(0)
    s_cmp_eq_u32 {sW}, 3
    s_cselect_b32 s24, s{sUP}, s24
    s_cselect_b32 s25, s{sUP + 1}, s25
    """)
    wait(tag_wq)
    a("s_barrier")
    vmem(f"buffer_store_byte {v(vFb)}, {v(vFlag)}, {DBG_}, 0 offen sc1")
    stamp("wq")
    u = nk0
    while vm["n"] - vm["done"] < maxout:
        kload(u)
        u += 1
    for th in range(2):
        for sg in range(2):
            for eta in range(2):
                a(f"ds_read_b64_tr_b16 {ag(aWQ + 8 * th + 4 * sg + 2 * eta, 2)}, {v(vTr)} offset:{(32 * sg + 16 * eta) * 256 + 8 * th}")
    a(f"v_mov_b32 {v(t1)}, 0x3f803f80\nv_cmp_eq_u32 vcc, 0, {v(t0)}")
    for i in range(8):
        a(f"v_cndmask_b32 {v(XP + i)}, {v(t1)}, {v(XP + i)}, vcc")
    for i in range(8):
        a(f"v_lshlrev_b32 {v(XO + 2 * i)}, 16, {v(XP + i)}\nv_and_b32 {v(XO + 2 * i + 1)}, 0xffff0000, {v(XP + i)}")
    a("s_waitcnt lgkmcnt(0)")

    QD = Z
    SD = ACC + 8

    def qproj():
        for sg in range(2):
            for th in range(2):
                d = v(ACC + 4 * th, 4)
                mfma(d, ag(aWQ + 8 * th + 4 * sg, 4), v(XP + 4 * sg, 4), d if sg else "0")
        for sg in range(2):
            mfma(v(SD, 4), v(XP + 4 * sg, 4), v(XP + 4 * sg, 4), v(SD, 4) if sg else "0")
        for hf in range(2):
            for th in range(2):
                cvt(QD + 4 + 2 * hf + th, ACC + 4 * th + 2 * hf, ACC + 4 * th + 2 * hf + 1)

    def qpublish(layer):
        ad = vQst if layer else vQst0
        publish([("buffer_store_dwordx2", v(QD + 4, 2), ad, sTB[2 * layer], W_Q),
                 ("buffer_store_dwordx2", v(QD + 6, 2), ad, sTB[2 * layer], W_Q + 128),
                 ("buffer_store_dwordx2", v(SD, 2), vSTst, sTB[2 * layer + 1], W_SQ)])

    qproj()
    vCh, vCa = Z + 2, Z + 3
    CQ = Z + 8
    chk = f"buffer_load_dword {v(vCh)}, {v(vCa)}, {DBG_}, 0 offen sc1"
    a(f"v_lshlrev_b32 {v(vCa)}, 2, {v(vL)}")
    tag_chk = None
    while u < 32:
        if u >= chk_at and tag_chk is None:
            tag_chk = vmem(chk, True)
        if u == pub_at:
            wait(tag_chk)
            a(f"""
            L_chk:
            v_and_b32 {v(Z)}, 0x80808080, {v(vCh)}
            v_cmp_ne_u32 vcc, 0x80808080, {v(Z)}
            s_cbranch_vccnz L_chk_retry
            L_chk_ok:
            s_lshl_b32 {sT0}, {sT}, 1
            v_readlane_b32 {sT1}, {v(vCh)}, {sT0}
            s_add_u32 {sT0}, {sT0}, 1
            v_readlane_b32 {sT0}, {v(vCh)}, {sT0}
            s_mul_i32 {sMX}, {sMX}, 0x01010101
            s_xor_b32 {sT0}, {sT0}, {sMX}
            s_xor_b32 {sT1}, {sT1}, {sMX}
            s_or_b32 {sT0}, {sT0}, {sT1}
            s_cselect_b32 s46, 0, {WS_BYTES}
            s_cselect_b32 s50, {WS_BYTES}, 0
            """)
            tail(f"""
            L_chk_retry:
            {chk}
            {budget}
            s_waitcnt vmcnt(0)
            s_cbranch_scc0 L_chk
            s_branch L_chk_ok
            """)
            qpublish(0)
            stamp("qpub")
            a("s_barrier")
        tag_k = kload(u)
        u += 1

    qloads = lambda layer: [(4, QA, vQA, sTB[2 * layer], W_Q), (4, QA + 4, vQA, sTB[2 * layer], W_Q + 64),
                            (4, ST, vST, sTB[2 * layer + 1], W_SQ)]
    q0 = qloads(0) + [(4, CQ, vQA, sTB[1], W_COL), (4, CQ + 4, vQA, sTB[1], W_COL + 64)]
    q0txt = [f"buffer_load_dwordx4 {v(r, 4)}, {v(ad)}, {WS_}, {so} offen offset:{off} sc1" for _, r, ad, so, off in q0]
    vKr = [Z, Z + 1]
    a(f"""
    v_lshrrev_b32 {v(Z + 2)}, 1, {v(vC)}
    v_mul_u32_u24 {v(Z + 2)}, {KSLOT}, {v(Z + 2)}
    v_and_b32 {v(Z + 3)}, 1, v0
    v_mul_u32_u24 {v(Z + 3)}, 384, {v(Z + 3)}
    v_lshl_add_u32 {v(Z + 3)}, {v(vS)}, 4, {v(Z + 3)}
    v_add3_u32 {v(vKr[0])}, {v(Z + 2)}, {v(Z + 3)}, {sKL}
    v_xor_b32 {v(Z + 3)}, 128, {v(Z + 3)}
    v_add3_u32 {v(vKr[1])}, {v(Z + 2)}, {v(Z + 3)}, {sKL}
    """)
    tag_v = []
    kread_done = False
    for u in range(32):
        if u == qld_at:
            for tx in q0txt:
                tag_q = vmem(tx, True)
        r = VV + 16 * (u >> 2) + (0, 8, 4, 12)[u & 3]
        tag_v.append(vmem(f"s_mov_b32 {sSO}, {u * 4096}\nbuffer_load_dwordx4 {v(r, 4)}, {v(vKV)}, {V_}, {sSO} offen nt", True))
        if not kread_done and vm["done"] >= tag_k:
            kread_done = True
            stamp("kdone")
            n = 0
            for h in range(2):
                for be in range(2):
                    for b in range(2):
                        for sg in range(2):
                            for half in range(2):
                                a(f"ds_read_b128 {ag(aK + 16 * (4 * h + 2 * be + b) + 8 * sg + 4 * half, 4)}, {v(vKr[sg])} "
                                  f"offset:{(2 * h + b) * 8 * KSLOT + be * 512 + half * 64}")
                                n += 1
                                if n % 12 == 0:
                                    a("s_waitcnt lgkmcnt(3)")
    assert kread_done
    a(f"s_mul_i32 {sT1}, {sW}, {4 * 1088}")
    for i in range(4):
        tag_wo = dma(vWO, WO_, i * 8192, sT1, L_WQ + i * 1088)
    zero(ACC, 32)
    wait(tag_q)
    a("L_q0:")
    validate([r + i for _, r, _, _, _ in q0 for i in range(4)], Z)
    a("s_cbranch_vccnz L_q0_retry\ns_waitcnt lgkmcnt(0)")
    tail("L_q0_retry:\n" + "\n".join(q0txt) + f"\n{budget}\ns_waitcnt vmcnt(0)\ns_branch L_q0")
    stamp("q0")

    def qk(A, P):
        for sg in range(2):
            for tl in range(8):
                smf(v(ACC + 4 * tl, 4), v(A + 4 * sg, 4), ag(aK + 16 * tl + 8 * sg, 8), vIdxQ)
        for tl in range(8):
            d = ACC + 4 * tl
            a(f"v_pk_add_f32 {v(d, 2)}, {v(d, 2)}, {v(d + 2, 2)}")
            a(f"v_add_f32 {v(QA + tl)}, {v(d)}, {v(d + 1)}")
        for i in range(4):
            a(f"v_permlane32_swap_b32 {v(QA + i)}, {v(QA + 4 + i)}")
        a(f"v_pk_add_f32 {v(QA, 2)}, {v(QA, 2)}, {v(QA + 4, 2)}")
        a(f"v_pk_add_f32 {v(QA + 2, 2)}, {v(QA + 2, 2)}, {v(QA + 6, 2)}")
        for i in range(2):
            a(f"v_permlane16_swap_b32 {v(QA + i)}, {v(QA + 2 + i)}")
        a(f"v_pk_add_f32 {v(P, 2)}, {v(QA, 2)}, {v(QA + 2, 2)}")

    def stats(col, out, scale):
        a(f"v_pk_add_f32 {v(ST, 2)}, {v(ST, 2)}, {v(ST + 2, 2)}")
        for x in (XOR1, XOR2):
            dpp("v_add_f32", ST, ST, ST, x)
            dpp("v_add_f32", ST + 1, ST + 1, ST + 1, x)
        a(f"""
        v_mul_f32 {v(ST + 2)}, {f32(-1 / 512)}, {v(ST + 1)}
        v_fmamk_f32 {v(ST)}, {v(ST)}, {f32(1 / 512)}, {v(vEPS)}
        v_fma_f32 {v(ST)}, -{v(ST + 2)}, {v(ST + 2)}, {v(ST)}
        v_max_f32 {v(ST)}, {v(ST)}, {v(vEPS)}
        v_rsq_f32 {v(out)}, {v(ST)}
        v_pk_mul_f32 {v(out + 2, 2)}, {v(col, 2)}, {v(ST + 2, 2)} op_sel_hi:[1,0]
        """)
        if scale != 1:
            a(f"v_mul_f32 {v(out)}, {f32(scale)}, {v(out)}")
        a(f"v_pk_mul_f32 {v(out + 2, 2)}, {v(out + 2, 2)}, {v(out, 2)} op_sel_hi:[1,0]")

    def stage_x(g, ack=True):
        poll([(4, Z, vXld, sG[g], 0)], Z + 4)
        a(f"ds_write_b128 {v(vXSw)}, {v(Z, 4)}\ns_waitcnt lgkmcnt(0)\ns_barrier")
        for tau in range(4):
            for rho in range(2):
                a(f"ds_read_b64_tr_b16 {v(ACC + 4 * tau + 2 * rho, 2)}, {v(vXSr)} offset:{tau * 1024 + rho * 512}")

    def stage_x2(extra=0):
        for tau in range(4):
            a(f"s_waitcnt lgkmcnt({min(15, 6 - 2 * tau + extra)})")
            mfma(v(XO + 4 * tau, 4), v(ACC + 4 * tau, 4), ag(aONE, 4), v(XO + 4 * tau, 4))
        for i in range(8):
            cvt(XP + i, XO + 2 * i, XO + 2 * i + 1)

    LOG2E = 1.4426950408889634
    for layer in range(2):
        TB, TB1 = sTB[2 * layer], sTB[2 * layer + 1]
        P, AA, PD = Z, Z + 4, Z + 2
        if layer == 0:
            for i in range(8):
                a(f"v_swap_b32 {v(QA + i)}, {v(CQ + i)}")
            qk(QA, CK)
            zero(ACC, 32)
            qk(CQ, P)
        else:
            poll(qloads(1), Z, lambda: zero(ACC, 32))
            stamp("q1")
            qk(QA, P)
        stats(CK, AA, LOG2E * 128 ** -0.5)
        a(f"v_pk_fma_f32 {v(P, 2)}, {v(P, 2)}, {v(AA, 2)}, {v(AA + 2, 2)} op_sel_hi:[1,0,1]")
        OL, PA = ACC, ACC + 8
        mx = AA
        a(f"v_max_f32 {v(mx)}, {v(P)}, {v(P + 1)}")
        for x in (XOR1, XOR2, "row_half_mirror", "row_mirror"):
            dpp("v_max_f32", mx, mx, mx, x)
        dpp("v_max_f32", mx, mx, mx, "row_bcast:15", "0xa")
        dpp("v_max_f32", mx, mx, mx, "row_bcast:31", "0xc")
        a(f"v_readlane_b32 {sMX}, {v(mx)}, 63")
        zero(OL, 8)
        a(f"""
        v_subrev_f32 {v(P)}, {sMX}, {v(P)}
        v_subrev_f32 {v(P + 1)}, {sMX}, {v(P + 1)}
        v_exp_f32 {v(P)}, {v(P)}
        v_exp_f32 {v(P + 1)}, {v(P + 1)}
        v_mov_b32 {v(AA + 1)}, {sMX}
        """)
        cvt(PD, P, P)
        cvt(PD + 1, P + 1, P + 1)
        a(f"v_add_f32 {v(AA)}, {v(P)}, {v(P + 1)}\nds_write_b64 {v(vLM)}, {v(AA, 2)}")
        stamp(f"sm{layer}")
        LM = QA
        for m in range(8):
            A = PA + 4 * (m & 1)
            for q in range(4):
                dpp("v_and_b32", A + q, PD + (q & 1), vMaskP, f"row_newbcast:{2 * m + (q >> 1)}")
            R = VV + 16 * m
            if layer == 0:
                wait(tag_v[4 * m + 3])
                for x, y in ((2, 8), (3, 9), (6, 12), (7, 13)):
                    a(f"v_swap_b32 {v(R + x)}, {v(R + y)}")
            smf(v(OL, 4), v(A, 4), v(R, 8), vIdxP)
            smf(v(OL + 4, 4), v(A, 4), v(R + 8, 8), vIdxP)
            if m == 3:
                a(f"""
                s_waitcnt lgkmcnt(0)
                s_barrier
                ds_read2st64_b64 {v(LM, 4)}, {v(vOr)} offset0:4 offset1:5
                ds_read2st64_b64 {v(LM + 4, 4)}, {v(vOr)} offset0:6 offset1:7
                """)
        stamp(f"pv{layer}")
        MM = Z + 4
        a(f"""
        s_waitcnt lgkmcnt(0)
        v_max3_f32 {v(MM)}, {v(LM + 1)}, {v(LM + 3)}, {v(LM + 5)}
        v_max_f32 {v(MM)}, {v(MM)}, {v(LM + 7)}
        """)
        for i in range(4):
            a(f"v_sub_f32 {v(LM + 2 * i + 1)}, {v(LM + 2 * i + 1)}, {v(MM)}")
        a(f"""
        s_mov_b64 exec, 0xffff
        ds_write_b128 {v(vOw)}, {v(OL, 4)}
        ds_write_b128 {v(vOw)}, {v(OL + 4, 4)} offset:16
        s_mov_b64 exec, -1
        """)
        for i in range(4):
            a(f"v_exp_f32 {v(LM + 2 * i + 1)}, {v(LM + 2 * i + 1)}")
        LA, LB, LC, LX = [f"L_{n}{layer}" for n in ("w1", "w23", "hopa", "stx")]
        a(f"""
        s_cmp_lg_u32 {sW}, 0
        s_waitcnt lgkmcnt(0)
        s_barrier
        s_cbranch_scc1 {LA}
        ds_read2st64_b64 {v(OL, 4)}, {v(vOr)} offset0:0 offset1:1
        ds_read2st64_b64 {v(OL + 4, 4)}, {v(vOr)} offset0:2 offset1:3
        s_waitcnt lgkmcnt(1)
        v_pk_mul_f32 {v(OL, 2)}, {v(OL, 2)}, {v(LM, 2)} op_sel:[0,1]
        v_pk_fma_f32 {v(OL, 2)}, {v(OL + 2, 2)}, {v(LM + 2, 2)}, {v(OL, 2)} op_sel:[0,1,0]
        s_waitcnt lgkmcnt(0)
        v_pk_fma_f32 {v(OL, 2)}, {v(OL + 4, 2)}, {v(LM + 4, 2)}, {v(OL, 2)} op_sel:[0,1,0]
        v_pk_fma_f32 {v(OL, 2)}, {v(OL + 6, 2)}, {v(LM + 6, 2)}, {v(OL, 2)} op_sel:[0,1,0]
        """)
        cvt(OL, OL, OL + 1)
        save = dict(vm)
        publish([("buffer_store_dword", v(OL), vAst, TB, W_A)])
        stamp(f"apub{layer}")
        a(f"{LC}:")
        if layer == 0:
            a(f"""
            v_mul_u32_u24 {v(vTr)}, 1088, {v(vS)}
            v_bfe_u32 {v(Z)}, v0, 2, 2
            v_lshl_add_u32 {v(vTr)}, {v(Z)}, 7, {v(vTr)}
            v_and_b32 {v(Z)}, 3, v0
            v_lshl_add_u32 {v(vTr)}, {v(Z)}, 3, {v(vTr)}
            s_lshl_b32 {sT0}, {sW}, 6
            s_add_u32 {sT0}, {sT0}, {L_WQ}
            v_add_u32 {v(vTr)}, {sT0}, {v(vTr)}
            """)
            wait(tag_wo)
            a("s_barrier")
            for th in range(2):
                for sg in range(2):
                    for eta in range(2):
                        for ka in range(2):
                            a(f"ds_read_b64_tr_b16 {ag(aWO + 16 * th + 8 * sg + 4 * eta + 2 * ka, 2)}, {v(vTr)} "
                              f"offset:{(8 * sg + 4 * eta) * 1088 + ka * 512 + th * 32}")
                if th == 0:
                    a("s_waitcnt lgkmcnt(4)")
        ML = ST
        DD = ACC + 8
        poll([(4, QA, vQA, TB, W_A), (4, QA + 4, vQA, TB, W_A + 64), (2, ML, vMLld, TB1, W_ML)], Z, lambda: zero(DD, 8))
        stamp(f"a{layer}")
        if layer == 0:
            a("s_waitcnt lgkmcnt(0)")
        for sg in range(2):
            for th in range(2):
                smf(v(DD + 4 * th, 4), v(QA + 4 * sg, 4), ag(aWO + 16 * th + 8 * sg, 8), vIdxQ)
        F, LT = Z, Z + 1
        dpp("v_max_f32", F, ML, ML, XOR1)
        dpp("v_max_f32", F, F, F, XOR2)
        dpp("v_max_f32", F, F, F, "row_half_mirror")
        a(f"""
        v_sub_f32 {v(F)}, {v(ML)}, {v(F)}
        v_exp_f32 {v(F)}, {v(F)}
        v_mul_f32 {v(LT)}, {v(F)}, {v(ML + 1)}
        """)
        for th in range(2):
            a(f"v_pk_add_f32 {v(DD + 4 * th, 2)}, {v(DD + 4 * th, 2)}, {v(DD + 4 * th + 2, 2)}")
        dpp("v_add_f32", LT, LT, LT, XOR1)
        for th in range(2):
            dpp("v_mul_f32", DD + 4 * th, F, DD + 4 * th, "row_newbcast:0")
        dpp("v_add_f32", LT, LT, LT, XOR2)
        for th in range(2):
            dpp("v_fmac_f32", DD + 4 * th, F, DD + 4 * th + 1, "row_newbcast:1")
        dpp("v_add_f32", LT, LT, LT, "row_half_mirror")
        a(f"""
        v_permlane32_swap_b32 {v(DD)}, {v(DD + 4)}
        v_rcp_f32 {v(LT)}, {v(LT)}
        v_add_f32 {v(DD + 1)}, {v(DD)}, {v(DD + 4)}
        v_add_f32 {v(DD)}, {v(DD)}, {v(DD + 4)}
        v_permlane16_swap_b32 {v(DD)}, {v(DD + 1)}
        v_add_f32 {v(DD)}, {v(DD)}, {v(DD + 1)}
        v_mul_f32 {v(DD)}, {v(DD)}, {v(LT)}
        """)
        dpp("v_mov_b32", DD + 1, DD, None, XOR1)
        cvt(DD, DD, DD + 1)
        vmem(f"buffer_store_dword {v(DD)}, {v(vBst)}, {WS_}, {sG[2 * layer]} offen sc1")
        stamp(f"bpub{layer}")
        waitall()
        a(f"{LX}:\ns_barrier")

        main, a_lines = a.lines, []
        a.lines = a_lines
        vm.update(save)
        a(f"""
        {LA}:
        s_cmp_lg_u32 {sW}, 1
        s_cbranch_scc1 {LB}
        v_mul_f32 {v(MM + 1)}, {v(LM)}, {v(LM + 1)}
        v_fmac_f32 {v(MM + 1)}, {v(LM + 2)}, {v(LM + 3)}
        v_fmac_f32 {v(MM + 1)}, {v(LM + 4)}, {v(LM + 5)}
        v_fmac_f32 {v(MM + 1)}, {v(LM + 6)}, {v(LM + 7)}
        """)
        for x in (XOR1, XOR2, "row_half_mirror", "row_mirror"):
            dpp("v_add_f32", MM + 1, MM + 1, MM + 1, x)
        dpp("v_add_f32", MM + 1, MM + 1, MM + 1, "row_bcast:15", "0xa")
        dpp("v_add_f32", MM + 1, MM + 1, MM + 1, "row_bcast:31", "0xc")
        publish([("buffer_store_dwordx2", v(MM, 2), vMLst, TB1, W_ML)])
        a(f"s_branch {LC}\n{LB}:")
        if layer == 0:
            vm.update(save)
            a(f"""
            s_cmp_eq_u32 {sW}, 3
            s_cselect_b32 {sT0}, {L_UP - L_GT}, 0
            s_cselect_b32 {sT1}, 3072, 0
            """)
            for i in range(6):
                dma(GUA + i % 3, GU_, (i // 3) * 32 * 2752, sT0, L_GT + i * 1024, False)
            for i in range(3):
                dma(vDN, DN_, i * 8192, sT1, L_DN + i * 1024, False)
            wait(tag_wo)
            a("s_barrier")
        a(f"s_branch {LX}")
        tail.lines += a_lines
        a.lines = main
        vm["done"] = -1

        stage_x(2 * layer)
        stamp(f"b{layer}")
        if layer == 0:
            a(f"""
            v_lshrrev_b32 {v(Z)}, 2, {v(vL)}
            v_mul_u32_u24 {v(Z)}, 96, {v(Z)}
            v_and_b32 {v(Z + 1)}, 3, v0
            v_lshlrev_b32 {v(Z + 1)}, 3, {v(Z + 1)}
            s_lshl_b32 {sT0}, {sW}, 5
            s_add_u32 {sT1}, {sT0}, {L_GT}
            v_add3_u32 {v(vTr)}, {v(Z)}, {v(Z + 1)}, {sT1}
            s_waitcnt lgkmcnt(4)
            """)
            for sg in range(2):
                for mt in range(2):
                    for eta in range(2):
                        a(f"ds_read_b64_tr_b16 {ag(aGU + 8 * mt + 4 * sg + 2 * eta, 2)}, {v(vTr)} "
                          f"offset:{(32 * sg + 16 * eta) * 96 + mt * (L_UP - L_GT)}")
            stage_x2(8)
            a(f"""
            v_bfe_u32 {v(Z)}, v0, 2, 2
            v_lshl_add_u32 {v(Z)}, {v(vS)}, 3, {v(Z)}
            v_lshl_add_u32 {v(Z)}, {v(Z)}, 7, {v(Z + 1)}
            s_add_u32 {sT1}, {sT0}, {L_DN}
            v_add_u32 {v(vTr)}, {sT1}, {v(Z)}
            s_waitcnt lgkmcnt(0)
            """)
            for eta in range(2):
                for ka in range(2):
                    a(f"ds_read_b64_tr_b16 {ag(aDN + 4 * eta + 2 * ka, 2)}, {v(vTr)} offset:{eta * 4096 + ka * 512}")
        else:
            stage_x2()
        GD = ACC + 16
        for sg in range(2):
            for mt in range(2):
                d = v(GD + 4 * mt, 4)
                mfma(d, v(XP + 4 * sg, 4), ag(aGU + 8 * mt + 4 * sg, 4), d if sg else "0")
        for sg in range(2):
            mfma(v(GD + 8, 4), v(XP + 4 * sg, 4), v(XP + 4 * sg, 4), v(GD + 8, 4) if sg else "0")
        cvt(Z, GD, GD + 4)
        st = [("buffer_store_dword", v(Z), vCst, TB1, W_C)]
        if layer == 0:
            cvt(Z + 1, GD + 1, GD + 5)
            st.append(("buffer_store_dword", v(Z + 1), vCst, sTB[3], W_COL))
        st.append(("buffer_store_dwordx2", v(GD + 8, 2), vSTst, TB1, W_SC))
        publish(st)
        stamp(f"cpub{layer}")
        ld = [(4, QA, vCld, TB1, W_C), (4, QA + 4, vCld, TB1, W_C + 16), (4, ST, vST, TB1, W_SC)]
        if layer == 0:
            ld += [(4, CQ, vCld, sTB[3], W_COL), (4, CQ + 4, vCld, sTB[3], W_COL + 16)]
        HD, GU = ACC, ACC + 4
        poll(ld, Z + 2, lambda: zero(HD, 4))
        stamp(f"c{layer}")
        if layer == 0:
            mfma(v(GU + 4, 4), ag(aDEL, 4), v(CQ, 4), "0")
            mfma(v(GU + 4, 4), ag(aDEL, 4), v(CQ + 4, 4), v(GU + 4, 4))
        mfma(v(GU, 4), ag(aDEL, 4), v(QA, 4), "0")
        mfma(v(GU, 4), ag(aDEL, 4), v(QA + 4, 4), v(GU, 4))
        if layer == 0:
            a(f"v_mov_b64 {v(CG, 2)}, {v(GU + 4, 2)}")
        stats(CG, AA, 1)
        a(f"""
        v_pk_fma_f32 {v(GU, 2)}, {v(GU, 2)}, {v(AA, 2)}, {v(AA + 2, 2)} op_sel_hi:[1,0,1]
        v_mul_f32 {v(Z)}, {f32(-LOG2E)}, {v(GU)}
        v_exp_f32 {v(Z)}, {v(Z)}
        v_mul_f32 {v(GU)}, {v(GU)}, {v(GU + 1)}
        v_add_f32 {v(Z)}, 1.0, {v(Z)}
        v_rcp_f32 {v(Z)}, {v(Z)}
        v_mul_f32 {v(GU)}, {v(GU)}, {v(Z)}
        """)
        cvt(GU, GU, GU)
        for q in range(4):
            a(f"v_and_b32 {v(QA + q)}, {v(GU)}, {v(MD + q)}")
        if layer == 0:
            a("s_waitcnt lgkmcnt(0)")
        smf(v(HD, 4), v(QA, 4), ag(aDN, 8), vIdxP)
        a(f"""
        v_pk_add_f32 {v(HD, 2)}, {v(HD, 2)}, {v(HD + 2, 2)}
        v_add_f32 {v(HD + 2)}, {v(HD)}, {v(HD + 1)}
        v_add_f32 {v(HD + 3)}, {v(HD)}, {v(HD + 1)}
        v_permlane32_swap_b32 {v(HD + 2)}, {v(HD + 3)}
        v_add_f32 {v(HD)}, {v(HD + 2)}, {v(HD + 3)}
        v_add_f32 {v(HD + 1)}, {v(HD + 2)}, {v(HD + 3)}
        v_permlane16_swap_b32 {v(HD)}, {v(HD + 1)}
        v_add_f32 {v(HD)}, {v(HD)}, {v(HD + 1)}
        """)
        dpp("v_mov_b32", HD + 1, HD, None, XOR1)
        cvt(HD, HD, HD + 1)
        vmem(f"buffer_store_dword {v(HD)}, {v(vDst)}, {WS_}, {sG[2 * layer + 1]} offen sc1")
        stamp(f"dpub{layer}")
        if layer == 1:
            a(f"s_cmp_lg_u32 {sT}, 0\ns_cbranch_scc1 L_fin")
        waitall()
        stage_x(2 * layer + 1)
        stamp(f"d{layer}")
        stage_x2()
        if layer == 0:
            qproj()
            qpublish(1)
            stamp("qpub1")
        else:
            for tau in range(4):
                vmem(f"buffer_store_dwordx2 {v(XP + 2 * tau, 2)}, {v(vOUT)}, {OUT_}, 0 offen offset:{32 * tau}")
    a("L_fin:")
    if calib:
        stamp("end")
        a(f"""
        s_or_b32 {sT0}, s2, {sW}
        s_cbranch_scc1 L_end
        L_cal:
        s_memrealtime s[{S_STAMP + 2}:{S_STAMP + 3}]
        s_waitcnt lgkmcnt(0)
        s_sub_u32 {sT0}, s{S_STAMP + 2}, s{S_STAMP}
        s_cmp_lt_u32 {sT0}, {calib}
        s_cbranch_scc1 L_cal
        """)
    elif names:
        stamp("end")
        a(f"s_waitcnt lgkmcnt(0)\ns_cmp_lg_u32 {sW}, {stamp_wave}\ns_cbranch_scc1 L_end")
        for k in range(len(names)):
            a(f"v_writelane_b32 {v(Z)}, s{S_STAMP + 2 * k}, {k}")
        a(f"""
        s_lshl_b32 {sT0}, s2, 7
        s_add_u32 {sT0}, {sT0}, 0x8000000
        v_lshl_add_u32 {v(Z + 1)}, {v(vL)}, 2, {sT0}
        s_mov_b64 exec, 0xffff
        buffer_store_dword {v(Z)}, {v(Z + 1)}, {WS_}, 0 offen
        """)
    a("L_end:\ns_endpgm")
    lines, nops = pad(a.lines + tail.lines)
    return wrap("\n".join(lines), 256, 256, LDS), names, nops


if __name__ == "__main__":
    out = sys.argv[1]
    kw = eval("dict(" + (sys.argv[2] if len(sys.argv) > 2 else "") + ")")
    txt, names, nops = gen(**kw)
    open(out, "w").write(txt)
    print(out, "stamps:", names, "nops:", nops)
```

```python
import struct
import sys
sys.path.insert(0, "gen")
from asmlib import *
from hazard import pad

KSLOT = 1040
KAREA = 32 * KSLOT
L_WQ = 4 * KAREA
L_XS = L_WQ + 16384
XS_T = (0, 1024, 2176, 3200)
L_O = L_XS + 4352
L_LM = L_O + 2048
L_WO = 16384
L_GT = 2 * KAREA
L_DN = 3 * KAREA - 3072
L_UP = L_DN + 6144
LDS = 160 * 1024

W_Q, W_A = 0, 2048
W_C, W_SQ, W_SC, W_ML, W_COL = 0, 1536, 1664, 1792, 2048
W_G = 32 * 16384
G_HOP, G_REP = 0x40000, 0x8000
WS_BYTES = 0x10000000
OOB = 0x80000000

X_, K_, V_, WQ_, WO_, GU_, DN_, OUT_, DBG_, WS_ = [f"s[{4 * i}:{4 * i + 3}]" for i in range(1, 11)]
sHF = "s[44:45]"
sFAR = "s46"
sG2 = ["s47", "s48", "s49"]
sT, sJ, sW, sKL, sT0, sT1, sSO, sSP, sTHR, sMX = [f"s{i}" for i in range(52, 62)]
sTB = ["s62", "s63", "s64", "s65"]
sG = ["s66", "s67", "s68", "s69"]
sUP = 70
S_STAMP = 72


def f32(x):
    return "0x%08x" % struct.unpack("<I", struct.pack("<f", x))[0]


class VAlloc:
    def __init__(self, lo):
        self.n = lo

    def __call__(self, n=1, al=1):
        self.n = (self.n + al - 1) // al * al
        r = self.n
        self.n += n
        return r


def gen(stamps=None, stamp_wave=0, maxout=16, nk0=4, chk_at=28, R=8, clk=False):
    a = Asm()
    tail = Asm()
    va = VAlloc(1)
    v = lambda r, n=1: vr(r, n)
    ag = lambda r, n=1: vr(r, n, "a")
    vL, vC, vS = va(), va(), va()
    vKV, vK, vWO, vDN = va(), va(), va(), va()
    vQst, vQA, vST, vSTst = va(), va(), va(), va()
    vIdxQ, vIdxP, vMaskP, vEPS = va(), va(), va(), va()
    XO = va(16, 4)
    XP = va(8, 4)
    CK = va(2, 2)
    CG = va(2, 2)
    vOw, vMw, vMr, vOr, vAst, vMLst, vMLld, vGst, vXld, vXSr, vXSw = [va() for _ in range(11)]
    vCst, vCld = va(), va()
    MD = va(4)
    GUA = va(3)
    vTr = va(2)
    T = va(0, 4)
    ACC = T
    QA = T + 32
    ST = T + 40
    Z = T + 44
    assert 128 - Z >= 16, Z
    VV = 128
    E = 192
    aK, aWQ, aWO, aGU, aDN, aONE, aDEL, aSEL = 0, 128, 144, 176, 192, 208, 212, 216
    sODD = "s[50:51]"
    LOG2E = 1.4426950408889634

    names = []

    def stamp(name):
        if stamps is not None and name in stamps:
            if name not in names:
                names.append(name)
            k = names.index(name)
            assert k < 15
            a(f"{'s_memtime' if clk else 's_memrealtime'} s[{S_STAMP + 2 * k}:{S_STAMP + 2 * k + 1}]")

    vm = dict(n=0, done=0)

    def vmem(text, throttle=False):
        if throttle and vm["n"] - vm["done"] >= maxout:
            wait(vm["n"] - maxout + 1)
        a(text)
        vm["n"] += 1
        return vm["n"]

    def wait(tag):
        if tag > vm["done"]:
            assert vm["n"] - tag <= 63
            a(f"s_waitcnt vmcnt({vm['n'] - tag})")
            vm["done"] = tag

    def dma(vaddr, srd, soff, m0base, ldsoff, throttle=True):
        pre = f"s_add_u32 m0, {m0base}, {ldsoff}\ns_mov_b32 {sSO}, {soff}\n"
        return vmem(pre + f"buffer_load_dwordx4 {v(vaddr)}, {srd}, {sSO} offen nt lds", throttle)

    WIDTH = {1: "dword", 2: "dwordx2", 4: "dwordx4"}

    def ld(r, addr, so, off, n=4):
        return f"buffer_load_{WIDTH[n]} {v(r, n)}, {v(addr)}, {WS_}, {so} offen offset:{off} sc1"

    def st(r, addr, so, off, n, thru):
        return f"buffer_store_{WIDTH[n]} {v(r, n)}, {v(addr)}, {WS_}, {so} offen offset:{off}" + (" sc1" if thru else "")

    def umax(regs, tmp):
        regs = list(regs)
        out = [f"v_max3_u32 {v(tmp)}, {v(regs[0])}, {v(regs[1])}, {v(regs[2])}"]
        rest = regs[3:]
        while len(rest) >= 2:
            out.append(f"v_max3_u32 {v(tmp)}, {v(tmp)}, {v(rest[0])}, {v(rest[1])}")
            rest = rest[2:]
        if rest:
            out.append(f"v_max_u32 {v(tmp)}, {v(tmp)}, {v(rest[0])}")
        return out

    def stale(tmp, lab):
        return [f"v_cmp_lt_u32 vcc, {sTHR}, {v(tmp)}", f"s_cbranch_vccnz {lab}"]

    budget = f"s_add_u32 {sSP}, {sSP}, 0x10000\ns_cselect_b32 {sTHR}, -1, {sTHR}"
    rng = lambda r, n: list(range(r, r + n))

    def dpp(op, d, s0, s1, ctrl, rm="0xf"):
        srcs = v(s0) if s1 is None else f"{v(s0)}, {v(s1)}"
        return f"{op}_dpp {v(d)}, {srcs} {ctrl} row_mask:{rm} bank_mask:0xf"

    XOR1, XOR2, HM, RM = "quad_perm:[1,0,3,2]", "quad_perm:[2,3,0,1]", "row_half_mirror", "row_mirror"

    def wave_reduce(op, r):
        return [dpp(op, r, r, r, x) for x in (XOR1, XOR2, HM, RM)] + \
               [dpp(op, r, r, r, "row_bcast:15", "0xa"), dpp(op, r, r, r, "row_bcast:31", "0xc")]

    mfma = lambda d, A, B, C: f"v_mfma_f32_16x16x32_bf16 {d}, {A}, {B}, {C}"
    smf = lambda d, A, B, idx: f"v_smfmac_f32_16x16x64_bf16 {d}, {A}, {B}, {v(idx)}"
    cvt = lambda d, x, y: f"v_cvt_pk_bf16_f32 {v(d)}, {v(x)}, {v(y)}"
    add = lambda d, x, y: f"v_add_f32 {v(d)}, {v(x)}, {v(y)}"
    mul = lambda d, x, y: f"v_mul_f32 {v(d)}, {x if isinstance(x, str) else v(x)}, {v(y)}"
    sw32 = lambda x, y: f"v_permlane32_swap_b32 {v(x)}, {v(y)}"
    sw16 = lambda x, y: f"v_permlane16_swap_b32 {v(x)}, {v(y)}"
    zero = lambda r, n: [f"v_mov_b64 {v(r + i, 2)}, 0" for i in range(0, n, 2)]

    def emit(items):
        for x in items:
            x() if callable(x) else a(x)

    def weave(ms, gaps, pre=None):
        for i, m in enumerate(ms):
            if pre:
                pre(i)
            a(m)
            g = gaps.get(i, [])
            emit(g)
            n = sum(1 for x in g if callable(x) or not x.endswith(":"))
            if i + 1 < len(ms) and n < 3:
                a(f"s_nop {2 - n}")

    a(f"""
    s_cmp_ge_u32 s2, 256
    s_cbranch_scc1 L_end
    s_load_dwordx2 s[16:17], s[0:1], 24
    s_load_dwordx2 s[8:9], s[0:1], 8
    """)
    stamp("start")
    vWq = E
    a(f"""
    v_lshrrev_b32 {v(Z)}, 6, v0
    s_and_b32 {sT0}, s2, 7
    s_lshr_b32 {sT1}, s2, 6
    v_readfirstlane_b32 {sW}, {v(Z)}
    s_lshl2_add_u32 {sT}, {sT0}, {sT1}
    s_bfe_u32 {sJ}, s2, 0x30003
    s_lshl_b32 {sT0}, {sJ}, 19
    s_lshl_b32 {sT1}, {sT}, 8
    s_add_u32 {sT0}, {sT0}, {sT1}
    v_and_b32 {v(vC)}, 15, v0
    v_and_b32 {v(vK)}, 16, v0
    v_and_b32 {v(Z)}, 0xe0, v0
    v_lshl_add_u32 {v(vWq)}, {v(vK)}, 12, {sT0}
    v_lshl_add_u32 {v(vWq)}, {v(Z)}, 8, {v(vWq)}
    v_lshl_add_u32 {v(vWq)}, {v(vC)}, 4, {v(vWq)}
    s_lshl_b32 {sT0}, {sT}, 20
    s_lshl_b32 {sT1}, {sJ}, 17
    s_add_u32 {sT0}, {sT0}, {sT1}
    v_lshl_add_u32 {v(vKV)}, v0, 4, {sT0}
    v_lshlrev_b32 {v(vK)}, 3, {v(vK)}
    v_xor_b32 {v(vK)}, {v(vK)}, {v(vKV)}
    s_mul_i32 {sKL}, {sW}, {KAREA}
    s_lshl_b32 {sT1}, {sW}, 12
    s_mov_b32 s18, 0x400000
    s_mov_b32 s19, 0x20000
    s_mov_b32 s10, 0x2000000
    s_mov_b32 s11, 0x20000
    s_waitcnt lgkmcnt(0)
    s_load_dwordx2 s[40:41], s[0:1], 88
    s_load_dwordx2 s[4:5], s[0:1], 0
    """)
    for i in range(4):
        dma(vWq, WQ_, i * 16 * 8192, sT1, L_WQ + i * 1024)

    def kload(u):
        return dma(vK, K_, u * 4096, sKL, (8 * (u & 3) + (u >> 2)) * KSLOT)

    for u in range(nk0):
        kload(u)
    XA, XF, NEG = E + 4, E + 12, E + 16
    O_, r_, cp, t0, t1, t2, t3, vFlag, vFb, vQst0, vXa = rng(E + 20, 11)

    def sel(d, cond, x, y=None):
        a(f"{cond}\nv_cndmask_b32 {v(d)}, {v(O_ if y is None else y)}, {v(x)}, vcc")

    a(f"""
    v_and_b32 {v(vL)}, 63, v0
    v_bfe_u32 {v(vS)}, v0, 4, 2
    s_lshl_b32 {sT0}, {sJ}, 7
    v_lshl_add_u32 {v(vXa)}, {v(vS)}, 5, {sT0}
    v_lshlrev_b32 {v(vXld)}, 4, {v(vL)}
    s_lshl_b32 {sTB[0]}, {sT}, 14
    s_lshl_b32 {sG[0]}, {sJ}, 12
    s_add_u32 {sG[0]}, {sG[0]}, {W_G}
    s_lshl_b32 {sT0}, {sT}, 7
    v_lshrrev_b32 {v(t0)}, 3, v0
    v_lshl_add_u32 {v(t1)}, {v(t0)}, 15, {sT0}
    v_and_b32 {v(t2)}, 7, v0
    v_lshl_add_u32 {v(t1)}, {v(t2)}, 4, {v(t1)}
    v_mov_b32 {v(O_)}, {OOB}
    v_cmp_gt_u32 vcc, 200, v0
    v_mov_b64 {v(NEG, 2)}, -1
    v_mov_b64 {v(NEG + 2, 2)}, -1
    v_cndmask_b32 {v(t1)}, {v(O_)}, {v(t1)}, vcc
    """)
    if R < 8:
        sel(t1, f"v_cmp_gt_u32 vcc, {8 * R}, {v(vL)}", t1)
    a(f"""
    s_lshl_b32 {sT0}, {sJ}, 8
    v_lshrrev_b32 {v(t0)}, 5, v0
    v_lshl_add_u32 {v(t2)}, {v(t0)}, 11, {sT0}
    v_and_b32 {v(t0)}, 31, v0
    v_lshl_add_u32 {v(t2)}, {v(t0)}, 3, {v(t2)}
    s_mov_b32 s42, {WS_BYTES}
    s_mov_b32 s43, 0x20000
    s_mov_b32 s6, 1024
    s_mov_b32 s7, 0x20000
    s_waitcnt lgkmcnt(0)
    """)
    vmem(st(NEG, t2, sTB[0], 0, 2, True))
    vmem(st(NEG, t1, sG[0], 0, 4, True))
    vmem(f"buffer_load_dwordx4 {v(XA, 4)}, {v(vXa)}, {X_}, 0 offen")
    vmem(f"buffer_load_dwordx4 {v(XA + 4, 4)}, {v(vXa)}, {X_}, 0 offen offset:16")
    tag_x = vmem(f"buffer_load_dwordx4 {v(XF, 4)}, {v(vXld)}, {X_}, 0 offen")
    u0 = nk0
    while vm["n"] < maxout:
        kload(u0)
        u0 += 1

    a(f"""
    s_load_dwordx2 s[12:13], s[0:1], 16
    s_load_dwordx2 s[20:21], s[0:1], 32
    s_load_dwordx2 s[24:25], s[0:1], 48
    s_load_dwordx2 s[{sUP}:{sUP + 1}], s[0:1], 56
    s_load_dwordx2 s[28:29], s[0:1], 64
    s_load_dwordx2 s[32:33], s[0:1], 72
    s_load_dwordx2 s[36:37], s[0:1], 80
    s_mov_b32 s14, 0x2000000
    s_mov_b32 s15, 0x20000
    s_mov_b32 s22, 0x400000
    s_mov_b32 s23, 0x20000
    s_mov_b32 s26, {512 * 2752}
    s_mov_b32 s27, 0x20000
    s_mov_b32 s30, {1376 * 1024}
    s_mov_b32 s31, 0x20000
    s_mov_b32 s34, 1024
    s_mov_b32 s35, 0x20000
    s_mov_b32 s38, 256
    s_mov_b32 s39, 0x20000
    s_mov_b32 s44, 0xcccccccc
    s_mov_b32 s45, 0xcccccccc
    s_mov_b32 s50, 0xaaaaaaaa
    s_mov_b32 s51, 0xaaaaaaaa
    s_mov_b32 {sSP}, 0
    s_mov_b32 {sTHR}, -2
    s_add_u32 {sTB[1]}, {sTB[0]}, 4096
    s_add_u32 {sTB[2]}, {sTB[0]}, 8192
    s_add_u32 {sTB[3]}, {sTB[0]}, 12288
    """)
    for g in range(1, 4):
        a(f"s_add_u32 {sG[g]}, {sG[0]}, {g * G_HOP}")
    for g in range(3):
        a(f"s_add_u32 {sG2[g]}, {sG[0]}, {g * G_HOP + 4 * G_REP}")
    a(f"""
    v_bfe_u32 {v(r_)}, v0, 2, 2
    v_and_b32 {v(cp)}, 3, v0
    s_getreg_b32 {sMX}, hwreg(HW_REG_XCC_ID, 0, 4)
    s_or_b32 {sMX}, {sMX}, 0x80
    s_lshl3_add_u32 {sT0}, {sT}, {sJ}
    v_mov_b32 {v(t0)}, {sT0}
    v_mov_b32 {v(vFb)}, {sMX}
    """)
    sel(vFlag, "v_cmp_eq_u32 vcc, 0, v0", t0)
    a(f"""
    s_lshl_b32 {sT0}, {sJ}, 8
    s_lshl_b32 {sT1}, {sW}, 5
    s_add_u32 {sT1}, {sT1}, {sT0}
    v_lshl_add_u32 {v(t1)}, {v(vS)}, 3, {sT1}
    v_bfe_u32 {v(t3)}, v0, 1, 1
    v_lshl_add_u32 {v(t1)}, {v(t3)}, 7, {v(t1)}
    v_add_u32 {v(t2)}, {4096 + W_COL}, {v(t1)}
    v_and_b32 {v(t0)}, 13, v0
    """)
    sel(vQst, f"v_cmp_eq_u32 vcc, 0, {v(t0)}", t1)
    sel(vQst0, f"v_cmp_eq_u32 vcc, 1, {v(t0)}", t2, vQst)
    a(f"""
    v_and_b32 {v(t0)}, 1, v0
    v_lshl_add_u32 {v(t1)}, {v(t0)}, 7, {sT0}
    v_lshrrev_b32 {v(t2)}, 1, {v(vL)}
    v_lshl_add_u32 {v(vAst)}, {v(t2)}, 2, {v(t1)}
    """)
    a(f"""
    v_lshl_add_u32 {v(t1)}, {v(r_)}, 1, {v(t0)}
    v_lshlrev_b32 {v(t1)}, 8, {v(t1)}
    v_lshl_add_u32 {v(t1)}, {v(vS)}, 4, {v(t1)}
    v_lshl_add_u32 {v(vQA)}, {v(t3)}, 7, {v(t1)}
    v_mul_u32_u24 {v(t2)}, 0xaaaa, {v(t3)}
    v_add_u32 {v(vIdxQ)}, 0x4444, {v(t2)}
    v_lshlrev_b32 {v(vST)}, 4, {v(cp)}
    s_lshl_b32 {sT0}, {sJ}, 3
    v_mov_b32 {v(t1)}, {sT0}
    """)
    sel(vSTst, f"v_cmp_eq_u32 vcc, 0, {v(vL)}", t1)
    a(f"""
    s_lshl2_add_u32 {sT0}, {sJ}, {sW}
    s_lshl_b32 {sT0}, {sT0}, 3
    v_mov_b32 {v(t1)}, {sT0}
    """)
    sel(vMLst, f"v_cmp_eq_u32 vcc, 63, {v(vL)}", t1)
    a(f"""
    v_lshl_add_u32 {v(t1)}, {v(vS)}, 2, {v(vC)}
    v_and_b32 {v(t1)}, 15, {v(t1)}
    v_lshlrev_b32 {v(vMLld)}, 4, {v(t1)}
    v_mov_b32 {v(t1)}, 0x0000ffff
    v_mov_b32 {v(t2)}, 0xffff0000
    v_cmp_eq_u32 vcc, 3, {v(cp)}
    v_cndmask_b32 {v(vMaskP)}, {v(t1)}, {v(t2)}, vcc
    v_cndmask_b32 {v(t1)}, {v(cp)}, 0, vcc
    v_or_b32 {v(t1)}, 12, {v(t1)}
    v_mul_u32_u24 {v(vIdxP)}, 0x1111, {v(t1)}
    """)
    a(f"""
    s_mul_i32 {sT0}, {sT}, 48
    s_sub_i32 {sT0}, 1376, {sT0}
    s_min_i32 {sT0}, {sT0}, 48
    v_cmp_gt_i32 vcc, {sT0}, {v(vL)}
    v_cndmask_b32 {v(t1)}, 0, {v(vMaskP)}, vcc
    """)
    for q in range(4):
        a(f"v_cmp_eq_u32 vcc, {q}, {v(r_)}\nv_cndmask_b32 {v(MD + q)}, 0, {v(t1)}, vcc")
    a(f"""
    v_lshlrev_b32 {v(t2)}, 4, {v(cp)}
    v_mov_b32 {v(t3)}, 0x3f80
    v_lshlrev_b32 {v(t2)}, {v(t2)}, {v(t3)}
    v_cmp_gt_u32 vcc, 2, {v(cp)}
    v_cndmask_b32 {v(t2)}, 0, {v(t2)}, vcc
    v_cmp_eq_u32 vcc, {v(r_)}, {v(vS)}
    v_cndmask_b32 {v(t2)}, 0, {v(t2)}, vcc
    v_mov_b32 {v(NEG)}, 0x3f803f80
    v_cndmask_b32 {v(t1)}, {v(NEG)}, 0, {sODD}
    v_cndmask_b32 {v(t3)}, 0, {v(NEG)}, {sODD}
    """)
    for i in range(4):
        a(f"""
        v_accvgpr_write_b32 {ag(aONE + i)}, {v(t1)}
        v_accvgpr_write_b32 {ag(aDEL + i)}, {v(t2)}
        v_accvgpr_write_b32 {ag(aSEL + i)}, {v(t1 if i < 2 else t3)}
        """)
    a(f"""
    s_lshl_b32 {sT0}, {sW}, 9
    s_add_u32 {sT1}, {sT0}, {L_O}
    v_lshl_add_u32 {v(vOw)}, {v(vC)}, 5, {sT1}
    v_mov_b32 {v(vMr)}, {L_LM + 63 * 16}
    s_lshl_b32 {sT1}, {sW}, 2
    s_add_u32 {sT1}, {sT1}, {L_LM}
    v_add_u32 {v(vMw)}, {sT1}, {v(vXld)}
    v_lshlrev_b32 {v(t1)}, 3, {v(vL)}
    v_add_u32 {v(vOr)}, {L_O}, {v(t1)}
    v_add_u32 {v(vXSr)}, {L_XS}, {v(t1)}
    s_add_u32 {sT1}, {sT0}, {L_XS}
    v_lshrrev_b32 {v(t1)}, 3, {v(vL)}
    v_lshl_add_u32 {v(t1)}, {v(t1)}, 5, {sT1}
    v_bfe_u32 {v(t2)}, v0, 1, 2
    v_lshl_add_u32 {v(t1)}, {v(t2)}, 3, {v(t1)}
    v_mul_u32_u24 {v(t2)}, {XS_T[2]}, {v(t0)}
    v_add_u32 {v(vXSw)}, {v(t1)}, {v(t2)}
    v_mov_b32 {v(vEPS)}, {f32(1e-5)}
    """)
    a(f"""
    s_lshl1_add_u32 {sT0}, {sT}, {sW}
    s_lshl_b32 {sT0}, {sT0}, 6
    v_lshl_add_u32 {v(t1)}, {v(vS)}, 15, {sT0}
    v_lshl_add_u32 {v(vGst)}, {v(vC)}, 2, {v(t1)}
    s_and_b32 {sT0}, s2, {R - 1}
    s_lshl4_add_u32 {sT0}, {sT0}, {sW}
    s_lshl_b32 {sT0}, {sT0}, 11
    v_add_u32 {v(vXld)}, {sT0}, {v(vXld)}
    """)
    a(f"""
    s_lshl_b32 {sT0}, {sW}, 9
    s_lshl2_add_u32 {sT0}, {sJ}, {sT0}
    v_lshl_add_u32 {v(t1)}, {v(vC)}, 5, {sT0}
    """)
    sel(vCst, f"v_cmp_eq_u32 vcc, 0, {v(vS)}", t1)
    a(f"""
    v_min_u32 {v(t1)}, 47, {v(vL)}
    v_lshlrev_b32 {v(vCld)}, 5, {v(t1)}
    s_lshl_b32 {sT0}, {sJ}, 7
    v_lshrrev_b32 {v(t1)}, 3, {v(vL)}
    v_lshl_add_u32 {v(t1)}, {v(t1)}, 10, {sT0}
    v_and_b32 {v(t2)}, 7, v0
    v_lshl_add_u32 {v(t1)}, {v(t2)}, 4, {v(t1)}
    s_lshl_b32 {sT0}, {sT}, 17
    s_lshl_b32 {sT1}, {sW}, 15
    s_add_u32 {sT0}, {sT0}, {sT1}
    v_add_u32 {v(vWO)}, {sT0}, {v(t1)}
    s_and_b32 {sT1}, {sW}, 1
    s_lshl1_add_u32 {sT0}, {sT}, {sT1}
    s_mul_i32 {sT0}, {sT0}, {24 * 1024}
    v_add_u32 {v(vDN)}, {sT0}, {v(t1)}
    s_mul_i32 {sT0}, {sJ}, {64 * 2752}
    s_mul_i32 {sT1}, {sT}, 96
    s_add_u32 {sT0}, {sT0}, {sT1}
    """)
    for i in range(3):
        a(f"""
        v_add_u32 {v(t1)}, {64 * i}, {v(vL)}
        v_mul_u32_u24 {v(t2)}, 10923, {v(t1)}
        v_lshrrev_b32 {v(t2)}, 16, {v(t2)}
        v_mul_u32_u24 {v(t3)}, 6, {v(t2)}
        v_sub_u32 {v(t1)}, {v(t1)}, {v(t3)}
        v_lshl_add_u32 {v(GUA + i)}, {v(t1)}, 4, {sT0}
        v_bfe_u32 {v(t1)}, {v(t2)}, 1, 1
        v_lshrrev_b32 {v(t3)}, 4, {v(t2)}
        v_lshl_add_u32 {v(t1)}, {v(t3)}, 1, {v(t1)}
        v_and_b32 {v(t3)}, 1, {v(t2)}
        v_lshl_add_u32 {v(t1)}, {v(t3)}, 3, {v(t1)}
        v_and_b32 {v(t3)}, 12, {v(t2)}
        v_lshl_add_u32 {v(t1)}, {v(t3)}, 2, {v(t1)}
        v_mul_u32_u24 {v(t1)}, 2752, {v(t1)}
        v_add_u32 {v(GUA + i)}, {v(GUA + i)}, {v(t1)}
        """)
    a(f"""
    s_lshl_b32 {sT0}, {sW}, 6
    s_add_u32 {sT0}, {sT0}, {L_WQ}
    v_lshrrev_b32 {v(t1)}, 2, {v(vL)}
    v_lshl_add_u32 {v(t1)}, {v(t1)}, 8, {sT0}
    v_lshl_add_u32 {v(vTr)}, {v(cp)}, 4, {v(t1)}
    s_waitcnt lgkmcnt(0)
    s_cmp_eq_u32 {sW}, 3
    s_cselect_b32 s24, s{sUP}, s24
    s_cselect_b32 s25, s{sUP + 1}, s25
    """)

    NM, RS = ST + 2, ST + 3
    QD = Z + 4
    PR = ACC + 16
    SD = ACC + 24
    var = [mul(NM, f32(-1 / 512), ST + 1),
           f"v_fmamk_f32 {v(ST)}, {v(ST)}, {f32(1 / 512)}, {v(vEPS)}",
           f"v_fma_f32 {v(ST)}, -{v(NM)}, {v(NM)}, {v(ST)}",
           f"v_max_f32 {v(ST)}, {v(ST)}, {v(vEPS)}",
           f"v_rsq_f32 {v(RS)}, {v(ST)}"]
    qscale = mul(RS, f32(LOG2E * 128 ** -0.5), RS)
    xcvt = [cvt(XP + i, XO + 2 * i, XO + 2 * i + 1) for i in range(8)]
    qm = [mfma(v(PR + 4 * th, 4), ag(aWQ + 8 * th + 4 * sg, 4), v(XP + 4 * sg, 4), v(PR + 4 * th, 4) if sg else "0")
          for sg in range(2) for th in range(2)]
    sm = [mfma(v(SD, 4), v(XP + 4 * sg, 4), v(XP + 4 * sg, 4), v(SD, 4) if sg else "0") for sg in range(2)]

    def qpack(th):
        d = PR + 4 * th
        return [cvt(QD + th, d, d + 1), cvt(QD + 2, d + 2, d + 3),
                f"v_cndmask_b32 {v(QD + th)}, {v(QD + th)}, {v(QD + 2)}, {sHF}"]

    vCh, vCa = Z + 2, Z + 3
    CQ = Z + 8
    vKr = [Z, Z + 1]
    chk = f"buffer_load_dword {v(vCh)}, {v(vCa)}, {DBG_}, 0 offen sc1"

    def first_q():
        a("s_barrier")
        vmem(f"buffer_store_byte {v(vFb)}, {v(vFlag)}, {DBG_}, 0 offen sc1")
        stamp("wq")
        for th in range(2):
            for sg in range(2):
                for eta in range(2):
                    a(f"ds_read_b64_tr_b16 {ag(aWQ + 8 * th + 4 * sg + 2 * eta, 2)}, {v(vTr)} "
                      f"offset:{(32 * sg + 16 * eta) * 256 + 8 * th}")
        for i in range(8):
            a(f"v_cndmask_b32 {v(XA + i)}, {v(XA + i)}, {v(NEG)}, {sODD}")
        for tau in range(4):
            for h in range(2):
                a(f"v_lshlrev_b32 {v(XO + 4 * tau + h)}, 16, {v(XA + 4 * h + tau)}")
                a(f"v_and_b32 {v(XO + 4 * tau + h + 2)}, 0xffff0000, {v(XA + 4 * h + tau)}")
        emit(xcvt)
        a("s_waitcnt lgkmcnt(0)")
        emit(qm)
        for i in range(4):
            a(f"v_lshlrev_b32 {v(XA + 2 * i)}, 16, {v(XF + i)}\nv_and_b32 {v(XA + 2 * i + 1)}, 0xffff0000, {v(XF + i)}")
        emit(qpack(0) + qpack(1))
        vmem(st(QD, vQst0, sTB[0], W_Q, 2, True))
        stamp("qpub")
        a(mul(ST, XA, XA) + "\n" + add(ST + 1, XA, XA + 1))
        for i in range(1, 8):
            a(f"v_fmac_f32 {v(ST)}, {v(XA + i)}, {v(XA + i)}")
            if i > 1:
                a(add(ST + 1, ST + 1, XA + i))
        for x, y in zip(wave_reduce("v_add_f32", ST), wave_reduce("v_add_f32", ST + 1)):
            a(x + "\n" + y)
        a(f"""
        v_readlane_b32 {sT0}, {v(ST)}, 63
        v_readlane_b32 {sT1}, {v(ST + 1)}, 63
        v_lshlrev_b32 {v(vCa)}, 2, {v(vL)}
        v_mov_b32 {v(ST)}, {sT0}
        v_mov_b32 {v(ST + 1)}, {sT1}
        """)
        emit(var + [qscale])
        a(f"""
        v_lshrrev_b32 {v(t1)}, 1, {v(vC)}
        v_mul_u32_u24 {v(t1)}, {KSLOT}, {v(t1)}
        v_mul_u32_u24 {v(t2)}, 384, {v(t0)}
        v_lshl_add_u32 {v(t2)}, {v(vS)}, 4, {v(t2)}
        v_add3_u32 {v(vKr[0])}, {v(t1)}, {v(t2)}, {sKL}
        v_xor_b32 {v(t2)}, 128, {v(t2)}
        v_add3_u32 {v(vKr[1])}, {v(t1)}, {v(t2)}, {sKL}
        v_mul_u32_u24 {v(t1)}, 1088, {v(vS)}
        v_lshl_add_u32 {v(t1)}, {v(r_)}, 7, {v(t1)}
        v_lshl_add_u32 {v(t1)}, {v(t0)}, 3, {v(t1)}
        v_and_b32 {v(t2)}, 2, v0
        v_lshl_add_u32 {v(t1)}, {v(t2)}, 4, {v(t1)}
        s_lshl_b32 {sT0}, {sW}, 6
        s_add_u32 {sT0}, {sT0}, {L_WO}
        v_add_u32 {v(vTr)}, {sT0}, {v(t1)}
        v_add_u32 {v(vTr + 1)}, {2 * KAREA}, {v(vTr)}
        """)

    q0 = [ld(QA, vQA, sTB[0], W_Q), ld(QA + 4, vQA, sTB[0], W_Q + 64),
          ld(CQ, vQA, sTB[1], W_COL), ld(CQ + 4, vQA, sTB[1], W_COL + 64), chk]

    def team_check():
        a(f"""
        L_chk:
        s_lshl_b32 {sT0}, {sT}, 1
        v_readlane_b32 {sT1}, {v(vCh)}, {sT0}
        s_add_u32 {sT0}, {sT0}, 1
        v_readlane_b32 {sT0}, {v(vCh)}, {sT0}
        s_and_b32 {sFAR}, {sT0}, {sT1}
        s_andn2_b32 {sFAR}, 0x80808080, {sFAR}
        s_cbranch_scc1 L_chk_retry
        L_chk_ok:
        s_mul_i32 {sMX}, {sMX}, 0x01010101
        s_xor_b32 {sT0}, {sT0}, {sMX}
        s_xor_b32 {sT1}, {sT1}, {sMX}
        s_or_b32 {sFAR}, {sT0}, {sT1}
        """)
        tail(f"""
        L_chk_retry:
        {chk}
        {budget}
        s_waitcnt vmcnt(0)
        s_cbranch_scc0 L_chk
        s_branch L_chk_ok
        """)
        for tx in q0:
            tag = vmem(tx)
        return tag

    def key_fragments():
        stamp("kdone")
        n = 0
        for h in range(2):
            for be in range(2):
                for b in range(2):
                    for sg in range(2):
                        for half in range(2):
                            a(f"ds_read_b128 {ag(aK + 16 * (4 * h + 2 * be + b) + 8 * sg + 4 * half, 4)}, {v(vKr[sg])} "
                              f"offset:{(2 * h + b) * 8 * KSLOT + be * 512 + half * 64}")
                            n += 1
                            if n % 12 == 0:
                                a("s_waitcnt lgkmcnt(3)")

    tag_v = []
    tag_chk = tag_q = tag_k = None
    q_done = k_done = False
    for u in range(u0, 64):
        if u < 32:
            tag_k = kload(u)
        else:
            assert q_done
            r = VV + 16 * ((u - 32) >> 2) + (0, 8, 4, 12)[u & 3]
            tag_v.append(vmem(f"s_mov_b32 {sSO}, {(u - 32) * 4096}\n"
                              f"buffer_load_dwordx4 {v(r, 4)}, {v(vKV)}, {V_}, {sSO} offen nt", True))
        if not q_done and vm["done"] >= tag_x:
            q_done = True
            first_q()
        if q_done and tag_chk is None and u >= chk_at:
            tag_chk = vmem(chk)
        if tag_chk and tag_q is None and vm["done"] >= tag_chk:
            tag_q = team_check()
        if u >= 32 and not k_done and vm["done"] >= tag_k:
            k_done = True
            key_fragments()
    assert k_done and tag_q
    a("s_waitcnt lgkmcnt(0)")
    for i in range(4):
        tag_wo = dma(vWO, WO_, i * 8192, sKL, L_WO + i * 1088)
    emit(zero(ACC, 32))
    wait(tag_q)
    a(f"""
    L_q0:
    v_and_b32 {v(vCh)}, 0x80808080, {v(vCh)}
    v_cmp_ne_u32 vcc, 0x80808080, {v(vCh)}
    v_cndmask_b32 {v(vCh)}, 0, -1, vcc
    """)
    emit(umax(rng(QA, 8) + rng(CQ, 8) + [vCh], Z) + stale(Z, "L_q0_retry"))
    tail("L_q0_retry:\n" + "\n".join(q0) + f"\n{budget}\ns_waitcnt vmcnt(0)\ns_branch L_q0")
    stamp("q0")

    P, PD, MX, LS, C1 = Z, Z + 2, Z + 4, Z + 5, Z + 6

    def qk(A, out, norm, live=None):
        ms = [smf(v(ACC + 4 * tl, 4), v(A + 4 * sg, 4), ag(aK + 16 * tl + 8 * sg, 8), vIdxQ)
              for p in (0, 2, 1, 3) for sg in range(2) for tl in (p, p + 4)]
        r = lambda tl: ACC + 4 * tl
        red = lambda tl: [add(r(tl), r(tl), r(tl) + 1), add(r(tl) + 2, r(tl) + 2, r(tl) + 3), add(r(tl), r(tl), r(tl) + 2)]
        g = {4: red(0), 5: red(4), 8: red(2), 9: red(6), 12: red(1), 13: red(5)}
        n1 = "s_nop 0"
        if live:
            m = umax(rng(A, 8), Z)
            g[0], g[1] = m[:3], m[3:] + stale(Z, live[0])
            g[2] = ["s_waitcnt vmcnt(0)"] + umax(rng(ST, 4), Z)
            g[3] = stale(Z, live[1]) + [live[2] + ":", add(ST, ST, ST + 2)]
            x = [add(ST + 1, ST + 1, ST + 3), dpp("v_add_f32", ST, ST, ST, XOR1),
                 dpp("v_add_f32", ST + 1, ST + 1, ST + 1, XOR1), dpp("v_add_f32", ST, ST, ST, XOR2),
                 dpp("v_add_f32", ST + 1, ST + 1, ST + 1, XOR2), var[1], var[0], var[2], var[3], var[4], qscale]
        else:
            x = [n1] * 11
        g[6] = [x[0], sw32(r(0), r(4)), x[1]]
        g[7] = [add(r(0), r(0), r(4)), x[2], x[3]]
        g[10] = [x[4], sw32(r(2), r(6)), x[5]]
        g[11] = [add(r(2), r(2), r(6)), x[6], x[7]]
        g[14] = [sw16(r(0), r(2)), sw32(r(1), r(5)), x[8]]
        y = [mul(C1, CK + 1, NM), mul(C1, C1, RS), f"v_fmac_f32 {v(out)}, {v(CK)}, {v(NM)}", mul(out, out, RS)] \
            if norm else [n1] * 4
        g[15] = [x[9], add(out, r(0), r(2)), add(r(1), r(1), r(5)), x[10]] + red(3) + [y[0]] + red(7) + \
                [y[1], y[2], sw32(r(3), r(7)), add(r(3), r(3), r(7)), y[3], sw16(r(1), r(3)), add(out + 1, r(1), r(3))]
        if norm:
            g[15].append(f"v_fma_f32 {v(out + 1)}, {v(out + 1)}, {v(RS)}, {v(C1)}")
        weave(ms, g)

    qk(CQ, CK, False)
    emit(zero(ACC, 32))
    qk(QA, P, True)
    a(f"s_cmp_lg_u32 {sFAR}, 0\ns_cbranch_scc1 L_far")

    OL, PA, LM, DD, CV, RD, GA = ACC, ACC + 8, QA, ACC + 8, ACC + 16, ACC + 20, Z + 8
    sub = lambda d, x, y: f"v_sub_f32 {v(d)}, {v(x)}, {v(y)}"
    un = lambda op, d, x: f"v_{op}_f32 {v(d)}, {v(x)}"
    vmw = lambda n: f"s_waitcnt vmcnt({n})"
    lgw = lambda n: f"s_waitcnt lgkmcnt({n})"

    def fold(A, D, g, extra=()):
        emit([cvt(CV + i, D + 2 * i, D + 2 * i + 1) for i in range(4)])
        a(mfma(v(RD, 4), A, v(CV, 4), "0"))
        emit(extra)
        if g == 3:
            a("s_mov_b64 exec, 0xffff")
        a(cvt(RD, RD, RD + 1))
        a(st(RD, vGst, sG[g], 0, 1, True))
        if g == 3:
            a("s_mov_b64 exec, -1")
        elif R == 8:
            a(st(RD, vGst, sG2[g], 0, 1, True))

    def gather(g, lab):
        wr = lambda k: (f"ds_write2_b64 {v(vXSw)}, {v(QA + 4 * k, 2)}, {v(QA + 4 * k + 2, 2)} "
                        f"offset0:{32 * k} offset1:{128 + 32 * k}")
        m = umax(rng(QA, 8), Z)
        emit([vmw(0), lab + ":", ld(QA, vXld, sG[g], 0), ld(QA + 4, vXld, sG[g], 1024), budget,
              vmw(1), wr(0), m[0], vmw(0), wr(1)] + m[1:] + stale(Z, lab) + [lgw(0)])

    def xread(n=4):
        for tau in range(n):
            for rho in range(2):
                a(f"ds_read_b64_tr_b16 {v(ACC + 4 * tau + 2 * rho, 2)}, {v(vXSr)} offset:{XS_T[tau] + rho * 512}")

    xsum = [mfma(v(XO + 4 * tau, 4), v(ACC + 4 * tau, 4), ag(aONE, 4), v(XO + 4 * tau, 4)) for tau in range(4)]

    def body(far):
        for layer in range(2):
            TB, TB1 = sTB[2 * layer], sTB[2 * layer + 1]
            L = lambda n: f"L_{n}{layer}{'f' if far else 'n'}"
            if layer == 1:
                stl = ld(ST, vST, TB1, W_SQ)
                emit([L("q") + ":", ld(QA, vQA, TB, W_Q), ld(QA + 4, vQA, TB, W_Q + 64), stl, budget])
                for tl in (1, 2, 3, 7, 5, 6, 0, 4):
                    emit(zero(ACC + 4 * tl, 4))
                a(vmw(1))
                qk(QA, P, True, (L("q"), L("sr"), L("sb")))
                tail("\n".join([L("sr") + ":", stl, budget, vmw(0)] + umax(rng(ST, 4), Z) + stale(Z, L("sr")) +
                               [f"s_branch {L('sb')}"]))
                stamp("q1")
            z, r = zero(OL, 8), wave_reduce("v_max_f32", MX)
            emit([f"v_max_f32 {v(MX)}, {v(P)}, {v(P + 1)}", z[0], z[1], r[0], z[2], z[3]] + r[1:])
            a(f"""
            ds_write_b32 {v(vMw)}, {v(MX)}
            v_readlane_b32 {sMX}, {v(MX)}, 63
            v_subrev_f32 {v(P)}, {sMX}, {v(P)}
            v_subrev_f32 {v(P + 1)}, {sMX}, {v(P + 1)}
            """)
            emit([un("exp", P, P), un("exp", P + 1, P + 1), cvt(PD, P, P), cvt(PD + 1, P + 1, P + 1), add(LS, P, P + 1)])
            stamp(f"sm{layer}")
            pa = lambda m, q: dpp("v_and_b32", PA + 4 * (m & 1) + q, PD + (q & 1), vMaskP, f"row_newbcast:{2 * m + (q >> 1)}")
            emit([pa(0, 0), pa(0, 2), pa(0, 1), pa(0, 3), pa(1, 0), pa(1, 1)])
            ms = [smf(v(OL + 4 * h, 4), v(PA + 4 * (m & 1), 4), v(VV + 16 * m + 8 * h, 8), vIdxP)
                  for m in range(8) for h in range(2)]
            r = wave_reduce("v_add_f32", LS)
            MM = Z + 6
            x = r[:2] + [lgw(0), "s_barrier", f"ds_read_b128 {v(LM, 4)}, {v(vMr)}"] + r[2:] + \
                [lambda: vmem(st(MX, vMLst, TB1, W_ML, 2, far)), lgw(0),
                 f"v_max3_f32 {v(MM)}, {v(LM)}, {v(LM + 1)}, {v(LM + 2)}", f"v_max_f32 {v(MM)}, {v(MM)}, {v(LM + 3)}"]
            g = {i: [pa((i + 3) >> 1, 2 - 2 * (i & 1)), pa((i + 3) >> 1, 3 - 2 * (i & 1)), x[i]] for i in range(13)}
            g[13] = [sub(LM + i, LM + i, MM) for i in range(3)]
            g[14] = [sub(LM + 3, LM + 3, MM), f"s_cmp_ge_u32 {sW}, 2"]
            g[15] = ["s_mov_b64 exec, 0xffff"]

            def pre(i):
                if layer == 0 and i % 2 == 0:
                    wait(tag_v[2 * i + 3])
                    for p, q in ((2, 8), (3, 9), (6, 12), (7, 13)):
                        a(f"v_swap_b32 {v(VV + 8 * i + p)}, {v(VV + 8 * i + q)}")

            weave(ms, g, pre)
            a(f"""
            ds_write_b128 {v(vOw)}, {v(OL, 4)}
            ds_write_b128 {v(vOw)}, {v(OL + 4, 4)} offset:16
            s_mov_b64 exec, -1
            """)
            emit([un("exp", LM + i, LM + i) for i in range(4)])
            stamp(f"pv{layer}")
            mll = ld(ST, vMLld, TB1, W_ML)
            ol = [ld(QA, vQA, TB, W_A), ld(QA + 4, vQA, TB, W_A + 64)]
            a(f"""
            s_waitcnt lgkmcnt(0)
            s_barrier
            s_cbranch_scc1 {L("x" if layer else "w")}
            ds_read2st64_b64 {v(OL, 4)}, {v(vOr)} offset0:0 offset1:1
            ds_read2st64_b64 {v(OL + 4, 4)}, {v(vOr)} offset0:2 offset1:3
            {mll}
            """)
            emit(zero(DD, 8))
            a(f"""
            s_waitcnt lgkmcnt(1)
            v_pk_mul_f32 {v(OL, 2)}, {v(OL, 2)}, {v(LM, 2)} op_sel_hi:[1,0]
            v_pk_fma_f32 {v(OL, 2)}, {v(OL + 2, 2)}, {v(LM, 2)}, {v(OL, 2)} op_sel:[0,1,0]
            s_waitcnt lgkmcnt(0)
            v_pk_fma_f32 {v(OL, 2)}, {v(OL + 4, 2)}, {v(LM + 2, 2)}, {v(OL, 2)} op_sel_hi:[1,0,1]
            v_pk_fma_f32 {v(OL, 2)}, {v(OL + 6, 2)}, {v(LM + 2, 2)}, {v(OL, 2)} op_sel:[0,1,0]
            """)
            emit([cvt(OL, OL, OL + 1), st(OL, vAst, TB, W_A, 1, far)] + ol)
            stamp(f"apub{layer}")
            a(vmw(3))
            if layer == 0:
                a("s_barrier")
                for sg in range(2):
                    for th in range(2):
                        for eta in range(2):
                            for ka in range(2):
                                a(f"ds_read_b64_tr_b16 {ag(aWO + 16 * th + 8 * sg + 4 * eta + 2 * ka, 2)}, {v(vTr + sg)} "
                                  f"offset:{eta * KAREA + ka * 512 + 16 * th}")
                    if sg == 0:
                        a(lgw(6))
            MJ, MT, LT = Z + 1, Z + 2, Z + 3
            m, s = umax(rng(ST, 4), Z), stale(Z, L("mr"))
            emit([L("m") + ":", f"v_max_f32 {v(MJ)}, {v(ST)}, {v(ST + 2)}"] + m +
                 [dpp("v_max_f32", MJ, MJ, MJ, XOR1)] + s + [dpp("v_max_f32", MT, MJ, MJ, XOR2)] +
                 [dpp("v_max_f32", MT, MT, MT, c) for c in (HM, RM)] +
                 [sub(ST, ST, MT), sub(ST + 2, ST + 2, MT), un("exp", ST, ST), un("exp", ST + 2, ST + 2),
                  mul(LT, ST, ST + 1), f"v_fmac_f32 {v(LT)}, {v(ST + 2)}, {v(ST + 3)}",
                  sub(MJ, MJ, MT), un("exp", MJ, MJ)] +
                 [dpp("v_add_f32", LT, LT, LT, c) for c in (XOR1, XOR2, HM, RM)] +
                 [un("rcp", LT, LT), dpp("v_mul_f32", MT, MJ, LT, "row_newbcast:0"),
                  dpp("v_mul_f32", MJ, MJ, LT, "row_newbcast:2"), cvt(MT, MT, MJ)])
            for i in range(4):
                a(f"v_cndmask_b32 {v(GA + i)}, {v(MT) + ', 0' if i < 2 else '0, ' + v(MT)}, {sODD}")
            a(f"s_branch {L('o')}")
            emit([L("mr") + ":", mll] + ol + [budget, vmw(2), f"s_branch {L('m')}"])
            nxt = "L_fin" if layer else L("y")
            emit([L("s") + ":", "s_nop 1", sm[0]] + xcvt[4:] + [sm[1], st(SD, vSTst, TB1, W_SC, 2, far), f"s_branch {nxt}"])
            emit([L("or") + ":"] + ol + [budget, "s_nop 2"] + zero(DD, 8) + [L("o") + ":", vmw(1)])
            if layer == 0:
                a(lgw(0))
            m = umax(rng(QA, 8), Z)
            ms = [smf(v(DD + 4 * th, 4), v(QA + 4 * sg, 4), ag(aWO + 16 * th + 8 * sg, 8), vIdxQ)
                  for sg in range(2) for th in range(2)]
            weave(ms, {0: [m[0], vmw(0), m[1]], 1: m[2:] + stale(Z, L("or"))[:1], 2: stale(Z, L("or"))[1:],
                       3: [] if layer else ["s_barrier"]})
            stamp(f"a{layer}")
            fold(v(GA, 4), DD, 2 * layer)
            stamp(f"bpub{layer}")
            gu_addr = f"""
            v_lshrrev_b32 {v(Z + 1)}, 2, {v(vL)}
            v_mul_u32_u24 {v(Z + 1)}, 96, {v(Z + 1)}
            v_and_b32 {v(Z + 2)}, 3, v0
            v_lshlrev_b32 {v(Z + 2)}, 3, {v(Z + 2)}
            s_lshl_b32 {sT0}, {sW}, 5
            s_add_u32 {sT0}, {sT0}, {L_GT}
            v_add3_u32 {v(vTr)}, {v(Z + 1)}, {v(Z + 2)}, {sT0}
            """
            if layer == 0:
                a(f"""
                v_lshlrev_b32 {v(Z + 1)}, 6, {v(vS)}
                v_sub_u32 {v(Z + 1)}, {v(vTr)}, {v(Z + 1)}
                v_add_u32 {v(vTr + 1)}, {L_DN - L_WO}, {v(Z + 1)}
                {gu_addr}
                """)
                main, a.lines = a.lines, []
                a(f"""
                {L("w")}:
                s_cmp_eq_u32 {sW}, 3
                s_cselect_b32 {sKL}, {L_UP - L_GT}, 0
                s_cselect_b32 {sT1}, 3072, 0
                s_waitcnt vmcnt(0)
                s_barrier
                {gu_addr}
                s_barrier
                """)
                for i in range(6):
                    dma(GUA + i % 3, GU_, (i // 3) * 4 * 2752, sKL, L_GT + i * 1024, False)
                for i in range(3):
                    dma(vDN, DN_, i * 8192, sT1, L_DN + i * 1024, False)
                a(f"s_waitcnt vmcnt(0)\ns_branch {L('x')}")
                tail.lines += a.lines
                a.lines = main
            gather(2 * layer, L("g"))
            a(f"{L('x')}:\ns_cmp_eq_u32 {sW}, 3\ns_barrier")
            stamp(f"b{layer}")
            xread()
            gur = [f"ds_read_b64_tr_b16 {ag(aGU + 8 * mt + 4 * sg + 2 * eta, 2)}, {v(vTr)} "
                   f"offset:{(32 * sg + 16 * eta) * 96 + mt * (L_UP - L_GT)}"
                   for sg in range(2) for mt in range(2) for eta in range(2)]
            gm = [mfma(v(PR + 4 * mt, 4), v(XP + 4 * sg, 4), ag(aGU + 8 * mt + 4 * sg, 4), v(PR + 4 * mt, 4) if sg else "0")
                  for sg in range(2) for mt in range(2)]
            g = {0: [lgw(4)], 1: [lgw(2)], 2: xcvt[:2] + [lgw(0)], 3: xcvt[2:4] + [f"s_cbranch_scc1 {L('s')}"],
                 4: xcvt[4:6], 5: xcvt[6:], 7: [f"s_cmp_eq_u32 {sW}, 2"]}
            if layer == 0:
                emit(gur[:4] + [lgw(10)])
                g[0], g[1], g[2] = gur[4:6] + [lgw(10)], gur[6:] + [lgw(10)], xcvt[:2] + [lgw(8)]
                g[3] += [lgw(4)]
                g[5] += [lgw(0)]
            else:
                a(lgw(6))
            weave(xsum + gm, g)
            emit([cvt(Z, PR, PR + 4), st(Z, vCst, TB1, W_C, 1, far)])
            if layer == 0:
                emit([cvt(Z + 1, PR + 1, PR + 5), st(Z + 1, vCst, sTB[3], W_COL, 1, far)])
            a(f"s_cbranch_scc1 {nxt}")
            stamp(f"cpub{layer}")
            HD, GU, S2 = ACC, ACC + 8, Z + 2
            if layer == 0:
                for th in range(2):
                    for eta in range(2):
                        for ka in range(2):
                            a(f"ds_read_b64_tr_b16 {ag(aDN + 8 * th + 4 * eta + 2 * ka, 2)}, {v(vTr + 1)} "
                              f"offset:{eta * 4096 + ka * 512 + 16 * th}")
            emit(zero(HD, 8))
            dm = lambda d, b, c: mfma(v(d, 4), ag(aDEL, 4), v(b, 4), v(d, 4) if c else "0")
            x1 = [dpp("v_add_f32", S2 + i, S2 + i, S2 + i, XOR1) for i in (1, 0)]
            x2 = [dpp("v_add_f32", ST + i, S2 + i, S2 + i, XOR2) for i in (1, 0)]
            pka = f"v_pk_add_f32 {v(S2, 2)}, {v(ST, 2)}, {v(ST + 2, 2)}"
            s = stale(Z, L("c"))
            emit([L("c") + ":", ld(ST, vST, TB1, W_SC), ld(QA, vCld, TB1, W_C), ld(QA + 4, vCld, TB1, W_C + 16)])
            if layer == 0:
                m = umax(rng(ST, 4) + rng(QA, 8) + rng(CQ, 8), Z)
                emit([ld(CQ, vCld, sTB[3], W_COL), ld(CQ + 4, vCld, sTB[3], W_COL + 16), budget, vmw(4), pka, m[0], vmw(3)])
                weave([dm(GU, QA, 0), dm(GU, QA + 4, 1), dm(GU + 4, CQ, 0), dm(GU + 4, CQ + 4, 1)],
                      {0: x1 + [m[1], vmw(2)], 1: m[2:5] + [vmw(1)], 2: m[5:7] + [vmw(0)],
                       3: m[7:] + [s[0], x2[0], s[1], x2[1]]})
            else:
                m = umax(rng(ST, 4) + rng(QA, 8), Z)
                emit([budget, vmw(2), pka, m[0], vmw(1)])
                weave([dm(GU, QA, 0), dm(GU, QA + 4, 1)], {0: x1 + [m[1], vmw(0)], 1: m[2:] + [s[0], x2[0], s[1], x2[1]]})
            stamp(f"c{layer}")
            col = CG if layer else GU + 4
            emit(var[:4] + [un("rsq", Z, ST),
                        f"v_pk_fma_f32 {v(GU, 2)}, {v(col, 2)}, {v(NM, 2)}, {v(GU, 2)} op_sel_hi:[1,0,1]",
                        mul(Z, f32(-LOG2E), Z), mul(Z, GU, Z), un("exp", Z, Z), mul(GU, GU, GU + 1),
                        f"v_fmac_f32 {v(ST)}, {v(Z)}, {v(ST)}", un("rcp", ST, ST)])
            if layer == 0:
                a(f"v_mov_b64 {v(CG, 2)}, {v(GU + 4, 2)}")
            emit([mul(GU, GU, ST), cvt(GU, GU, GU)])
            for q in range(4):
                a(f"v_and_b32 {v(QA + q)}, {v(GU)}, {v(MD + q)}")
            if layer == 0:
                a(lgw(0))
            weave([smf(v(HD + 4 * th, 4), v(QA, 4), ag(aDN + 8 * th, 8), vIdxP) for th in range(2)], {})
            fold(ag(aSEL, 4), HD, 2 * layer + 1, [f"s_cmp_lg_u32 {sT}, 0"] if layer else [])
            stamp(f"dpub{layer}")
            if layer == 0:
                gather(1, L("h"))
                a(f"{L('y')}:\ns_barrier")
                stamp("d0")
                xread()
                a(lgw(6))
                p0, p1 = qpack(0), qpack(1)
                weave(xsum + qm + sm, {0: [lgw(4)], 1: [lgw(2)], 2: xcvt[:2] + [lgw(0)], 3: xcvt[2:4], 4: xcvt[4:6],
                                       5: xcvt[6:], 8: p0, 9: p1})
                emit([st(QD, vQst, sTB[2], W_Q, 2, far), st(SD, vSTst, sTB[3], W_SQ, 2, far)])
                stamp("qpub1")
            else:
                a(f"""
                s_cbranch_scc1 L_fin
                s_lshl4_add_u32 {sT0}, {sJ}, {sW}
                s_lshl_b32 {sT0}, {sT0}, 3
                v_lshl_add_u32 {v(vTr)}, {v(vS)}, 5, {sT0}
                v_lshl_add_u32 {v(vTr)}, {v(vC)}, 10, {v(vTr)}
                s_cmp_eq_u32 {sW}, 0
                s_cbranch_scc1 {L("z")}
                v_add_u32 {v(vXSr)}, {XS_T[2]}, {v(vXSr)}
                """)
                for i in range(0, 8, 2):
                    a(f"v_mov_b64 {v(XO + i, 2)}, {v(XO + 8 + i, 2)}")
                a(L("z") + ":")
                gather(3, L("h"))
                a("s_barrier")
                stamp("d1")
                xread(2)
                a(lgw(2))
                weave(xsum[:2], {0: [lgw(0)]})
                emit([cvt(XP, XO, XO + 2), cvt(XP + 2, XO + 1, XO + 3), cvt(XP + 1, XO + 4, XO + 6),
                      f"buffer_store_dwordx2 {v(XP, 2)}, {v(vTr)}, {OUT_}, 0 offen", cvt(XP + 3, XO + 5, XO + 7),
                      f"buffer_store_dwordx2 {v(XP + 2, 2)}, {v(vTr)}, {OUT_}, 0 offen offset:16"])

    save = dict(vm)
    body(False)
    a("L_fin:")
    if names:
        stamp("end")
        a(f"s_waitcnt lgkmcnt(0)\ns_cmp_lg_u32 {sW}, {stamp_wave}\ns_cbranch_scc1 L_end")
        for k in range(len(names)):
            a(f"v_writelane_b32 {v(Z)}, s{S_STAMP + 2 * k}, {k}")
        a(f"""
        s_lshl_b32 {sT0}, s2, 7
        s_add_u32 {sT0}, {sT0}, 0x8000000
        v_lshl_add_u32 {v(Z + 1)}, {v(vL)}, 2, {sT0}
        s_mov_b64 exec, 0xffff
        buffer_store_dword {v(Z)}, {v(Z + 1)}, {WS_}, 0 offen
        """)
    a("L_end:\ns_endpgm")
    a.lines += tail.lines
    tail.lines = []
    vm.update(save)
    a("L_far:\ns_nop 1")
    body(True)
    a("s_branch L_fin")
    lines, nops = pad(a.lines + tail.lines)
    return wrap("\n".join(lines), 256, 256, LDS), names, nops


if __name__ == "__main__":
    out = sys.argv[1]
    kw = eval("dict(" + (sys.argv[2] if len(sys.argv) > 2 else "") + ")")
    txt, names, nops = gen(**kw)
    open(out, "w").write(txt)
    print(out, "stamps:", names, "nops:", nops)
```
